```python
import torch

def _softmax(x, axis=-1):
    return torch.softmax(x, dim=axis)
def _gelu(x):
    return torch.nn.functional.gelu(x, approximate="tanh")
def _silu(x):
    return torch.nn.functional.silu(x)
def _sigmoid(x):
    return torch.sigmoid(x)
def _layernorm(x, axis=-1, eps=1e-5):
    m = x.mean(dim=axis, keepdim=True)
    v = x.var(dim=axis, keepdim=True, unbiased=False)
    return (x - m) / torch.sqrt(v + eps)
def _scatter_add(tgt, idx, src, axis=0):
    return tgt.clone().index_add_(axis, idx, src)
def _segment_sum(src, seg, n):
    out = torch.zeros((n,) + src.shape[1:], dtype=src.dtype)
    return out.index_add_(0, seg, src)
def _pad(x, pw):
    flat = tuple(v for pair in reversed(pw) for v in pair)
    return torch.nn.functional.pad(x, flat)

kernel_name = 'parallel_sum__sliding_local_dilated__mixer_token_mlp__prompt'

def setup_inputs():

    _w = (lambda a: (lambda t: t.to(torch.bfloat16) if t.is_floating_point() else t)(torch.as_tensor(a)))
    def _A_setup():
        B, S, D = 1, 2048, 640
        return {
            "x": _w((lambda *s: torch.randn(*s, dtype=torch.bfloat16) * 0.05)(B, S, D)),
            "wqkv": _w((lambda *s: torch.randn(*s, dtype=torch.bfloat16) * 0.05)(D, 3 * D)),
            "wo": _w((lambda *s: torch.randn(*s, dtype=torch.bfloat16) * 0.05)(D, D)),
        }
    _A_in = _A_setup()

    def _B_setup():
        B, S, D, F = 1, 2048, 640, 1728
        return {
            "x": _w((lambda *s: torch.randn(*s, dtype=torch.bfloat16) * 0.05)(B, S, D)),
            "w1": _w((lambda *s: torch.randn(*s, dtype=torch.bfloat16) * 0.8)(S, F) * (S ** -0.5)),
            "b1": _w((lambda *s: torch.randn(*s, dtype=torch.bfloat16) * 0.8)(F) * 0.02),
            "w2": _w((lambda *s: torch.randn(*s, dtype=torch.bfloat16) * 0.8)(F, S) * (F ** -0.5)),
            "b2": _w((lambda *s: torch.randn(*s, dtype=torch.bfloat16) * 0.8)(S) * 0.02),
        }
    _B_in = _B_setup()

    return {
        "A_x": _A_in["x"],
        "A_wqkv": _A_in["wqkv"],
        "A_wo": _A_in["wo"],
        "B_x": _B_in["x"],
        "B_w1": _B_in["w1"],
        "B_b1": _B_in["b1"],
        "B_w2": _B_in["w2"],
        "B_b2": _B_in["b2"],
    }

def reference(A_x, A_wqkv, A_wo, B_x, B_w1, B_b1, B_w2, B_b2):
    def _A_ref(x, wqkv, wo):
        B, S, D = x.shape
        H = 32; Dh = D // H
        W, dil = 8, 2
        qkv = (lambda x, *d: x.permute(*d))((x @ wqkv).reshape(B, S, 3, H, Dh), 2, 0, 3, 1, 4)
        q, k, v = qkv[0], qkv[1], qkv[2]
        scale = Dh ** -0.5
        pos = torch.arange(S)
        off = torch.arange(W) * dil
        idx = pos[:, None] - off[None, :]
        mask = idx >= 0
        idx_c = torch.where(mask, idx, 0).reshape(-1)
        kg = k[:, :, idx_c, :].reshape(B, H, S, W, Dh)
        vg = v[:, :, idx_c, :].reshape(B, H, S, W, Dh)
        logits = torch.einsum("bhsd,bhswd->bhsw", q, kg) * scale
        logits = torch.where(mask[None, None, :, :], logits, -1e9)
        attn = _softmax(logits, axis=-1)
        o = torch.einsum("bhsw,bhswd->bhsd", attn, vg)
        return (lambda x, *d: x.permute(*d))(o, 0, 2, 1, 3).reshape(B, S, D) @ wo

    def _B_ref(x, w1, b1, w2, b2):
        B, S, D = x.shape
        h = _layernorm(x, axis=-1)
        u = torch.einsum("bsd,sf->bdf", h, w1) + b1
        u = _gelu(u)
        y = torch.einsum("bdf,fs->bds", u, w2) + b2
        return (lambda x, *d: x.permute(*d))(y, 0, 2, 1)

    x = A_x
    xn = _layernorm(x, axis=-1)
    return x + _A_ref(xn, A_wqkv, A_wo) + _B_ref(xn, B_w1, B_b1, B_w2, B_b2)
```

```python
import re

def _regs(tok):
    tok = tok.strip()
    neg = tok.lstrip('-')
    m = re.fullmatch(r'(?:abs\()?([vsa])(\d+)\)?', neg)
    if m:
        return [(m.group(1), int(m.group(2)))]
    m = re.fullmatch(r'([vsa])\[(\d+):(\d+)\]', neg)
    if m:
        return [(m.group(1), i) for i in range(int(m.group(2)), int(m.group(3)) + 1)]
    if neg in ('vcc', 'vcc_lo', 'vcc_hi'):
        return [('s', 'vcc')]
    if neg in ('exec', 'exec_lo', 'exec_hi'):
        return [('s', 'exec')]
    if neg == 'm0':
        return [('s', 'm0')]
    return []

TRANS = ('v_exp_f32', 'v_log_f32', 'v_rcp_f32', 'v_rsq_f32', 'v_sqrt_f32', 'v_sin_f32', 'v_cos_f32', 'v_rcp_iflag_f32')

class Ins:
    __slots__ = ('text', 'mn', 'ops', 'mods', 'cls', 'w', 'r', 'srcC', 'srcAB', 'passes', 'nop', 'label', 'target',
                 'dpp', 'trans', 'wide_store_data', 'lds_dma', 'is_perm', 'is_readlane', 'cndmask_mask', 'partial')
    def __init__(self, text):
        self.text = text
        self.label = None
        self.target = None
        self.w = []; self.r = []; self.srcC = []; self.srcAB = []
        self.passes = 0; self.nop = 0; self.dpp = False; self.trans = False
        self.wide_store_data = []; self.lds_dma = False; self.is_perm = False; self.is_readlane = False
        self.partial = False
        t = text.split(';')[0].strip()
        if t.endswith(':'):
            self.label = t[:-1]; self.cls = 'LABEL'; self.mn = None
            return
        if t.startswith('.') or not t:
            self.cls = 'DIR'; self.mn = None
            return
        parts = t.split(None, 1)
        mn = parts[0]; self.mn = mn
        rest = parts[1] if len(parts) > 1 else ''
        ops = []; cur = ''; depth = 0
        for ch in rest:
            if ch in '[(': depth += 1
            if ch in '])': depth -= 1
            if ch == ',' and depth == 0:
                ops.append(cur.strip()); cur = ''
            else:
                cur += ch
        if cur.strip(): ops.append(cur.strip())
        mods = ''
        if ops:
            last = ops[-1].split(None, 1)
            if len(last) > 1 and not last[0].endswith(('(',)):
                ops[-1] = last[0]; mods = last[1]
        self.ops = ops; self.mods = mods
        R = lambda i: _regs(ops[i]) if i < len(ops) else []
        allr = lambda a: [x for o in ops[a:] for x in _regs(o)]
        if mn.startswith('v_mfma'):
            self.cls = 'MFMA'
            self.w = R(0); self.srcAB = R(1) + R(2); self.srcC = R(3); self.r = self.srcAB + self.srcC
            self.passes = 8 if '32x32' in mn else 4
        elif mn.startswith('v_'):
            self.cls = 'VALU'
            base = mn.replace('_e32', '').replace('_e64', '').replace('_dpp', '').replace('_sdwa', '')
            self.trans = base in TRANS
            self.dpp = any(k in mods for k in ('quad_perm', 'row_', 'wave_'))
            self.partial = 'dst_sel' in mods
            if base.startswith('v_cmp'):
                self.w = R(0); self.r = allr(1)
            elif base in ('v_readfirstlane_b32', 'v_readlane_b32'):
                self.w = R(0); self.r = allr(1); self.is_readlane = True
            elif base.startswith(('v_add_co', 'v_sub_co', 'v_addc_co', 'v_subb_co', 'v_subrev_co')):
                self.w = R(0) + R(1); self.r = allr(2)
            elif 'permlane' in base:
                self.w = R(0) + R(1); self.r = R(0) + R(1); self.is_perm = True
            elif base.startswith(('v_fmac', 'v_pk_fmac', 'v_dot2c', 'v_writelane', 'v_mac')):
                self.w = R(0); self.r = allr(0)
            else:
                self.w = R(0); self.r = allr(1)
                if self.dpp: self.r = self.r + R(0)
        elif mn.startswith('ds_'):
            self.cls = 'DS'
            if mn.startswith(('ds_write', 'ds_add', 'ds_max', 'ds_min')) and 'rtn' not in mn:
                self.r = allr(0)
            else:
                self.w = R(0); self.r = allr(1)
        elif mn.startswith(('buffer_', 'global_')):
            self.cls = 'VMEM'
            if mn in ('buffer_inv', 'buffer_wbl2'):
                pass
            elif 'load' in mn:
                if re.search(r'\blds\b', mods) or 'load_lds' in mn:
                    self.lds_dma = True; self.r = allr(0) + [('s', 'm0')]
                else:
                    self.w = R(0); self.r = allr(1)
            elif 'store' in mn:
                self.r = allr(0)
                if mn.endswith(('x3', 'x4')):
                    self.wide_store_data = R(0) if mn.startswith('buffer_') else R(1)
            else:
                self.r = allr(0)
                if 'sc0' in mods: self.w = R(0) if mn.startswith('buffer_') else R(0)
        elif mn.startswith('s_'):
            self.cls = 'SALU'
            if mn == 's_nop':
                self.nop = int(ops[0], 0) + 1
            elif mn.startswith(('s_cmp', 's_bitcmp')):
                self.r = allr(0)
            elif mn in ('s_waitcnt', 's_barrier', 's_endpgm', 's_setprio', 's_sleep'):
                pass
            elif mn.startswith(('s_branch', 's_cbranch')):
                self.target = ops[0]
            elif 'saveexec' in mn:
                self.w = R(0) + [('s', 'exec')]; self.r = allr(1) + [('s', 'exec')]
            else:
                self.w = R(0); self.r = allr(1)
        else:
            raise ValueError('unknown instr ' + text)

    def states(self):
        if self.cls in ('LABEL', 'DIR'): return 0
        return self.nop if self.nop else 1

def need(P, C):
    n = 0
    Pw = set(P.w); Cr = set(C.r); Cw = set(C.w)
    vw = {x for x in Pw if x[0] == 'v'}
    sw = {x for x in Pw if x[0] == 's'}
    if P.cls == 'VALU':
        if C.cls == 'MFMA' and vw & Cr: n = max(n, 2)
        if C.cls == 'VALU':
            if sw & {x for x in Cr if x[0] == 's'}: n = max(n, 4 if C.is_readlane else 2)
            if C.is_readlane and vw & Cr: n = max(n, 1)
            if C.dpp and vw & Cr: n = max(n, 2)
            if C.is_perm and vw & Cr: n = max(n, 2)
            if P.trans and not C.trans and vw & Cr: n = max(n, 1)
            if P.trans and C.trans and vw & Cr: n = max(n, 1)
            if P.partial and vw & (Cr | Cw): n = max(n, 1)
            if ('s', 'exec') in Pw and C.dpp: n = max(n, 5)
        if C.cls == 'VMEM' and sw & Cr: n = max(n, 5)
        if C.cls == 'MFMA' and ('s', 'exec') in Pw: n = max(n, 4)
    if P.cls == 'MFMA':
        p4 = P.passes == 4
        D = set(P.w)
        if C.cls == 'MFMA':
            cc = set(C.srcC)
            if cc & D:
                if cc == D and C.passes == P.passes and sorted(C.srcC) == sorted(P.w): pass
                else: n = max(n, 6 if p4 else 10)
            if set(C.srcAB) & D: n = max(n, 8 if p4 else 12)
            if set(C.w) & D and not (cc & D): n = max(n, 8 if p4 else 12)
        elif C.cls in ('VALU', 'VMEM', 'DS'):
            if D & (Cr | Cw): n = max(n, 8 if p4 else 12)
        if C.cls == 'VALU' and set(P.srcC) & Cw: n = max(n, 3 if p4 else 7)
    if P.cls == 'SALU' and ('s', 'm0') in Pw and (C.lds_dma): n = max(n, 1)
    if P.cls == 'VMEM' and P.wide_store_data:
        d = set(P.wide_store_data)
        if d & Cw: n = max(n, 2 if C.cls in ('VALU', 'MFMA') else 1)
    return n

class Prog:
    def __init__(self):
        self.ins = []
    def I(self, *lines):
        for t in lines:
            for l in t.split('\n'):
                if l.strip(): self.ins.append(Ins(l.strip()))
    def label(self, name):
        self.ins.append(Ins(name + ':'))
    def raw(self, text):
        i = Ins('.dir'); i.text = text; self.ins.append(i)
    def finalize(self, W=14):
        ins = self.ins
        labels = {x.label: k for k, x in enumerate(ins) if x.label}
        branches = {}
        for k, x in enumerate(ins):
            if x.target: branches.setdefault(x.target, []).append(k)
        extra = [0] * len(ins)
        ninserted = 0
        def scan(C, k, dist, seen, entry_branch=False):
            best = 0
            first = True
            while k >= 0 and dist <= W:
                x = ins[k]
                if x.label:
                    for b in branches.get(x.label, []):
                        key = (b, dist)
                        if key not in seen:
                            seen.add(key)
                            best = max(best, scan(C, b, dist, seen, True))
                    k -= 1
                    continue
                if x.cls == 'DIR':
                    k -= 1; continue
                if x.mn in ('s_branch', 's_endpgm') and not (first and entry_branch):
                    return best
                first = False
                nd = need(x, C)
                if nd > dist: best = max(best, nd - dist)
                dist += x.states() + extra[k]
                k -= 1
            return best
        for k, C in enumerate(ins):
            if C.cls in ('LABEL', 'DIR'): continue
            e = scan(C, k - 1, 0, set())
            if e > 0:
                extra[k] = e; ninserted += e
        out = []
        for k, x in enumerate(ins):
            e = extra[k]
            while e > 0:
                n = min(e, 16)
                out.append(f'  s_nop {n-1}')
                e -= n
            if x.label: out.append(x.text)
            elif x.cls == 'DIR': out.append(x.text)
            else: out.append('  ' + x.text)
        self.ninserted = ninserted
        return '\n'.join(out)
```

```python
from asm import Prog
S, D, F, H, DH = 2048, 640, 1728, 32, 20
KA_X, KA_WQKV, KA_WO, KA_BX, KA_W1, KA_B1, KA_W2, KA_B2, KA_OUT, KA_DBG, KA_WS = [8*i for i in range(11)]
WS_XN  = 0x000000
WS_HT  = 0x280000
WS_WOF = 0x500000
WS_UF  = 0x600000
WS_OF  = 0x880000
WS_END = 0xB00000
SZ_X = S*D*2
SZ_WQKV = D*3*D*2
SZ_WO = D*D*2
SZ_W1 = S*F*2
SZ_W2 = F*S*2

def srd(p, r, lo, size):
    p.I(f's_mov_b32 s{r}, s{lo}',
        f's_and_b32 s{r+1}, s{lo+1}, 0xffff',
        f's_mov_b32 s{r+2}, {size}',
        f's_mov_b32 s{r+3}, 0x20000')

def kernel_header(name):
    return (f'.globl {name}\n.p2align 8\n.type {name},@function\n{name}:')

def kernel_desc(name, vgpr, sgpr=96):
    acc = (vgpr + 3)//4*4
    return f'''.amdhsa_kernel {name}
  .amdhsa_next_free_vgpr {vgpr}
  .amdhsa_next_free_sgpr {sgpr}
  .amdhsa_accum_offset {acc}
  .amdhsa_group_segment_fixed_size 0
  .amdhsa_kernarg_size 88
  .amdhsa_user_sgpr_count 2
  .amdhsa_user_sgpr_kernarg_segment_ptr 1
  .amdhsa_system_sgpr_workgroup_id_x 1
  .amdhsa_float_denorm_mode_32 3
.end_amdhsa_kernel'''
```

```python
from common import *

NLN = 256
NPREP = 80
K1_GRID = NLN + NPREP
K1_BLOCK = 128
K1_LDS = 2*5120

def dpp_allreduce16(p, regs):
    for sh in (8, 4, 2, 1):
        for r in regs:
            p.I(f'v_add_f32_dpp v{r}, v{r}, v{r} row_ror:{sh} row_mask:0xf bank_mask:0xf')

def gen_k1(name='prep_kernel'):
    p = Prog()
    p.raw(kernel_header(name))
    p.I(f's_cmp_ge_u32 s2, {K1_GRID}',
        's_cbranch_scc1 K1_DONE',
        f's_load_dwordx2 s[4:5], s[0:1], {KA_X}',
        f's_load_dwordx2 s[6:7], s[0:1], {KA_WO}',
        f's_load_dwordx2 s[8:9], s[0:1], {KA_WS}',
        'v_lshrrev_b32 v1, 6, v0',
        'v_readfirstlane_b32 s24, v1',
        'v_and_b32 v1, 63, v0',
        f's_cmp_ge_u32 s2, {NLN}',
        's_cbranch_scc1 K1_PREP')
    p.I('v_and_b32 v2, 15, v1',
        'v_lshrrev_b32 v3, 4, v1',
        's_lshl_b32 s25, s2, 3',
        's_lshl_b32 s26, s24, 2',
        's_add_u32 s25, s25, s26',
        'v_add_u32 v3, s25, v3',
        'v_mul_u32_u24 v4, 1280, v3',
        'v_lshl_add_u32 v4, v2, 4, v4',
        's_waitcnt lgkmcnt(0)')
    srd(p, 12, 4, SZ_X)
    srd(p, 16, 8, WS_END)
    IN = 8; Fv = 28; T = 92
    for i in range(5):
        p.I(f'buffer_load_dwordx4 v[{IN+4*i}:{IN+4*i+3}], v4, s[12:15], 0 offen offset:{i*256}')
    p.I('v_lshrrev_b32 v5, 4, v3',
        'v_mul_u32_u24 v5, 20480, v5',
        'v_and_b32 v6, 15, v3',
        'v_lshl_add_u32 v5, v6, 4, v5',
        'v_lshrrev_b32 v6, 2, v2',
        'v_lshl_add_u32 v5, v6, 10, v5',
        'v_and_b32 v6, 3, v2',
        'v_lshl_add_u32 v5, v6, 8, v5')
    if WS_XN: p.I(f'v_add_u32 v5, {WS_XN}, v5')
    HO = 112
    p.I('v_mul_u32_u24 v7, 160, v3', f'v_add_u32 v7, {WS_HT}, v7', 's_mov_b32 s27, 327680')
    for i in range(5):
        p.I(f'v_add_u32 v6, {16*i}, v2',
            f'v_mul_u32_u24 v68, 6554, v6',
            f'v_lshrrev_b32 v68, 16, v68',
            f'v_mul_u32_u24 v69, 10, v68',
            f'v_sub_u32 v6, v6, v69',
            f'v_mul_lo_u32 v68, v68, s27',
            f'v_lshl_add_u32 v68, v6, 4, v68',
            f'v_add_u32 v{HO+i}, v68, v7')
    for i in range(1, 5):
        p.I(f's_mov_b32 s{30+i}, {i*4096}')
    p.I('v_mov_b32 v70, 0x3acccccd')
    for i in range(5):
        p.I(f's_waitcnt vmcnt({4-i})')
        for j in range(4*i, 4*i+4):
            p.I(f'v_lshlrev_b32 v{Fv+2*j}, 16, v{IN+j}',
                f'v_and_b32 v{Fv+2*j+1}, 0xffff0000, v{IN+j}')
    pr = lambda r: f'v[{r}:{r+1}]'
    def sum_chain(dst4, fma=False):
        for c in range(4):
            a = dst4 + 2*c
            if fma:
                p.I(f'v_pk_mul_f32 {pr(a)}, {pr(Fv+2*c)}, {pr(Fv+2*c)}')
            else:
                p.I(f'v_pk_add_f32 {pr(a)}, {pr(Fv+2*c)}, {pr(Fv+2*(c+4))}')
        start = 4 if fma else 8
        for j in range(start, 20):
            a = dst4 + 2*(j % 4)
            if fma: p.I(f'v_pk_fma_f32 {pr(a)}, {pr(Fv+2*j)}, {pr(Fv+2*j)}, {pr(a)}')
            else:   p.I(f'v_pk_add_f32 {pr(a)}, {pr(a)}, {pr(Fv+2*j)}')
        p.I(f'v_pk_add_f32 {pr(dst4)}, {pr(dst4)}, {pr(dst4+2)}',
            f'v_pk_add_f32 {pr(dst4+4)}, {pr(dst4+4)}, {pr(dst4+6)}',
            f'v_pk_add_f32 {pr(dst4)}, {pr(dst4)}, {pr(dst4+4)}',
            f'v_add_f32 v{dst4}, v{dst4}, v{dst4+1}')
    sum_chain(T)
    dpp_allreduce16(p, [T])
    p.I(f'v_mul_f32 v{T}, v70, v{T}', f'v_sub_f32 v100, 0, v{T}')
    for j in range(20):
        p.I(f'v_pk_add_f32 {pr(Fv+2*j)}, {pr(Fv+2*j)}, v[100:101] op_sel_hi:[1,0]')
    sum_chain(T, fma=True)
    dpp_allreduce16(p, [T])
    p.I(f'v_mov_b32 v71, 0x3727c5ac',
        f'v_fma_f32 v{T}, v{T}, v70, v71',
        f'v_rsq_f32 v102, v{T}')
    for j in range(20):
        p.I(f'v_pk_mul_f32 {pr(Fv+2*j)}, {pr(Fv+2*j)}, v[102:103] op_sel_hi:[1,0]')
    for j in range(20):
        p.I(f'v_cvt_pk_bf16_f32 v{IN+j}, v{Fv+2*j}, v{Fv+2*j+1}')
    for i in range(5):
        so = '0' if i == 0 else f's{30+i}'
        p.I(f'buffer_store_dwordx4 v[{IN+4*i}:{IN+4*i+3}], v5, s[16:19], {so} offen')
    T2 = 104
    sum_chain(T)
    sum_chain(T2, fma=True)
    dpp_allreduce16(p, [T, T2])
    p.I(f'v_mul_f32 v{T}, v70, v{T}',
        f'v_fma_f32 v{T2}, v{T2}, v70, v71',
        f'v_fma_f32 v{T2}, -v{T}, v{T}, v{T2}',
        f'v_rsq_f32 v102, v{T2}',
        f'v_mul_f32 v100, v{T}, v102',
        f'v_sub_f32 v100, 0, v100')
    for j in range(20):
        p.I(f'v_pk_fma_f32 {pr(Fv+2*j)}, {pr(Fv+2*j)}, v[102:103], v[100:101] op_sel_hi:[1,0,0]')
    HP = 72
    for j in range(20):
        p.I(f'v_cvt_pk_bf16_f32 v{HP+j}, v{Fv+2*j}, v{Fv+2*j+1}')
    for i in range(5):
        p.I(f'buffer_store_dwordx4 v[{HP+4*i}:{HP+4*i+3}], v{HO+i}, s[16:19], 0 offen')
    p.I('s_endpgm')
    p.label('K1_PREP')
    p.I(f's_sub_u32 s25, s2, {NLN}',
        's_lshl_b32 s25, s25, 1',
        's_add_u32 s25, s25, s24',
        's_and_b32 s26, s25, 7',
        's_lshr_b32 s27, s25, 3',
        's_mul_i32 s28, s27, 52',
        's_lshr_b32 s28, s28, 8',
        's_mul_i32 s29, s28, 5',
        's_sub_u32 s29, s27, s29',
        's_mul_i32 s30, s28, 160',
        's_mul_i32 s31, s29, 40',
        's_add_u32 s31, s31, s30',
        's_add_u32 s30, s30, 16',
        's_cmp_eq_u32 s29, 4',
        's_cselect_b32 s30, s30, s31',
        's_cselect_b32 s31, 80, 20',
        's_cselect_b32 s32, 20, 4',
        's_waitcnt lgkmcnt(0)')
    srd(p, 20, 6, SZ_WO)
    srd(p, 16, 8, WS_END)
    p.I('s_mul_i32 s33, s26, 160',
        's_mul_i32 s34, s24, 5120',
        's_movk_i32 s35, 1280')
    for j in range(5):
        p.I(f'v_add_u32 v2, {64*j}, v1',
            f'v_mul_u32_u24 v3, 6554, v2',
            f'v_lshrrev_b32 v3, 16, v3',
            f'v_mul_u32_u24 v4, 10, v3',
            f'v_sub_u32 v4, v2, v4',
            f'v_lshrrev_b32 v5, 4, v3',
            f'v_mul_lo_u32 v5, v5, s31',
            f'v_bfe_u32 v6, v3, 2, 2',
            f'v_mul_lo_u32 v6, v6, s32',
            f'v_and_b32 v7, 3, v3',
            f'v_add3_u32 v5, v5, v6, v7',
            f'v_add_u32 v5, s30, v5',
            f'v_mul_lo_u32 v5, v5, s35',
            f'v_lshl_add_u32 v5, v4, 4, v5',
            f's_add_u32 m0, s34, {j*1024}',
            f'buffer_load_dwordx4 v5, s[20:23], s33 offen lds')
    p.I('v_lshrrev_b32 v2, 2, v1',
        'v_mul_u32_u24 v2, 160, v2',
        'v_and_b32 v3, 3, v1',
        'v_lshl_add_u32 v2, v3, 3, v2',
        'v_add_u32 v2, s34, v2',
        'v_lshlrev_b32 v3, 4, v1',
        's_mul_i32 s36, s26, 20',
        's_add_u32 s36, s36, s27',
        's_mul_i32 s36, s36, 5120',
        f's_add_u32 s36, s36, {WS_WOF}',
        's_waitcnt vmcnt(0)')
    for mb in range(5):
        p.I(f'ds_read_b64_tr_b16 v[{8+4*mb}:{9+4*mb}], v2 offset:{32*mb}',
            f'ds_read_b64_tr_b16 v[{10+4*mb}:{11+4*mb}], v2 offset:{32*mb+2560}')
    for mb in range(5):
        p.I(f's_waitcnt lgkmcnt({8-2*mb})')
        off = mb*1024
        if off < 4096:
            p.I(f'buffer_store_dwordx4 v[{8+4*mb}:{11+4*mb}], v3, s[16:19], s36 offen offset:{off}')
        else:
            p.I(f's_add_u32 s36, s36, 4096', f'buffer_store_dwordx4 v[{8+4*mb}:{11+4*mb}], v3, s[16:19], s36 offen')
    p.label('K1_DONE')
    p.I('s_endpgm')
    return p.finalize(), kernel_desc(name, 120, 48)

if __name__ == '__main__':
    assert all((c*6554) >> 16 == c//10 for c in range(320))
    assert all((k*52) >> 8 == k//5 for k in range(20))
    t, d = gen_k1()
    print(t); print(d)
```

```python
from common import *
from ring import *
import struct

K2_GRID = 256
K2_BLOCK = 512
U_NS = 6
U_STAGE = 10240 + 16384
U_N = 32
Q_NS = 6
Q_STAGE = 9216 + 15360
Q_N = 20
K2_LDS = max(U_NS*U_STAGE, Q_NS*Q_STAGE)

def f2u(x): return struct.unpack('<I', struct.pack('<f', x))[0]
def hexf(x): return hex(f2u(x))

def interleave(*streams):
    out = []
    n = max(len(s) for s in streams)
    for i in range(n):
        for s in streams:
            if i < len(s): out.append(s[i])
    return out

def gen_u(p):
    p.label('K2_U')
    p.I('s_cmp_lt_u32 s24, 4', 's_cbranch_scc1 K2_UC')
    srd(p, 20, 4, SZ_W1)
    WSS, W1S = 's[16:19]', 's[20:23]'
    p.I('v_lshlrev_b32 v2, 4, v1',
        'v_lshrrev_b32 v3, 3, v1',
        'v_bfe_u32 v4, v1, 4, 2',
        'v_lshlrev_b32 v4, 1, v4',
        'v_and_b32 v5, 7, v1',
        'v_xor_b32 v4, v4, v5',
        'v_lshlrev_b32 v4, 4, v4',
        'v_mul_u32_u24 v3, 3456, v3',
        'v_add_u32 v3, v3, v4',
        's_mul_i32 s30, s25, 327680',
        f's_add_u32 s30, s30, {WS_HT}',
        's_lshl_b32 s31, s26, 8')
    hitems = [Item(WSS, 'v2', 's30', j*1024, j*1024) for j in range(10)]
    witems = [Item(W1S, 'v3', 's31', m*8*3456 + hf*128, 10240 + hf*8192 + m*1024) for hf in range(2) for m in range(8)]
    split = [hitems[0:5] + witems[0:2], hitems[5:10] + witems[2:4], witems[4:10], witems[10:16]]
    for L in range(4):
        if L < 3:
            p.I(f's_cmp_lg_u32 s24, {4+L}', f's_cbranch_scc1 K2_UL{L}_NEXT')
        gen_loader(p, f'K2_UL{L}', [(U_N, split[L], [('s30', 10240), ('s31', 64*3456)])], U_NS, U_STAGE, 's34', 's35', 's36')
        if L < 3: p.label(f'K2_UL{L}_NEXT')
    p.label('K2_UC')
    ACC = 8
    SET = [48, 76]
    VA0, VA1, VB = 2, 3, 4
    A0, A1, B_ = 104, 105, 106
    BIAS = 108
    srd(p, 20, 6, F*2)
    p.I('v_lshrrev_b32 v5, 4, v1',
        'v_lshlrev_b32 v5, 3, v5',
        's_lshl_b32 s30, s26, 8',
        's_lshl_b32 s31, s24, 6',
        's_add_u32 s30, s30, s31',
        f'buffer_load_dwordx2 v[116:117], v5, s[20:23], s30 offen',
        f'buffer_load_dwordx2 v[118:119], v5, s[20:23], s30 offen offset:32')
    p.I('v_lshrrev_b32 v7, 2, v1',
        'v_bfe_u32 v5, v1, 3, 2',
        's_and_b32 s30, s24, 1',
        's_lshl_b32 s30, s30, 1',
        'v_xor_b32 v5, s30, v5',
        'v_lshlrev_b32 v5, 5, v5',
        'v_lshl_add_u32 v5, v7, 7, v5',
        'v_and_b32 v6, 3, v1',
        'v_lshl_add_u32 v5, v6, 3, v5',
        's_lshr_b32 s30, s24, 1',
        's_lshl_b32 s30, s30, 13',
        's_add_u32 s30, s30, 10240',
        f'v_add_u32 v{VA0}, s30, v5',
        f'v_xor_b32 v{VA1}, 32, v{VA0}',
        'v_mul_u32_u24 v7, 160, v7',
        f'v_lshl_add_u32 v{VB}, v6, 3, v7')
    for r in range(ACC, ACC+40): p.I(f'v_mov_b32 v{r}, 0')
    for r in range(SET[1], SET[1]+28): p.I(f'v_mov_b32 v{r}, 0')
    p.I('s_mov_b32 s34, 0', f's_mov_b32 s35, {U_N}')
    def mfmas(s):
        out = []
        for db in range(5):
            for fb in range(2):
                a = SET[s] + 4*fb; b = SET[s] + 8 + 4*db; c = ACC + (fb*5+db)*4
                out.append((f'v_mfma_f32_16x16x32_bf16 v[{c}:{c+3}], v[{a}:{a+3}], v[{b}:{b+3}], v[{c}:{c+3}]', fb, db))
        return out
    def reads(s, e):
        out = []
        for fb in range(2):
            a = SET[s] + 4*fb; va = (A0, A1)[fb]
            out.append((f'ds_read_b64_tr_b16 v[{a}:{a+1}], v{va} offset:{e*4096}', (s, 'A', fb)))
            out.append((f'ds_read_b64_tr_b16 v[{a+2}:{a+3}], v{va} offset:{e*4096+2048}', (s, 'A', fb)))
        for db in range(5):
            b = SET[s] + 8 + 4*db
            out.append((f'ds_read_b64_tr_b16 v[{b}:{b+1}], v{B_} offset:{e*5120+db*32}', (s, 'B', db)))
            out.append((f'ds_read_b64_tr_b16 v[{b+2}:{b+3}], v{B_} offset:{e*5120+db*32+2560}', (s, 'B', db)))
        return out
    p.label('K2_UCL')
    ds = DS(p)
    p.I('s_barrier',
        f'v_add_u32 v{A0}, s34, v{VA0}', f'v_add_u32 v{A1}, s34, v{VA1}', f'v_add_u32 v{B_}, s34, v{VB}')
    r0 = reads(0, 0); m1 = mfmas(1); k = 0
    for mi, m in enumerate(m1):
        for _ in range(2 if mi < 4 else 1):
            if k < len(r0): ds.issue(*r0[k]); k += 1
        p.I(m[0])
    while k < len(r0): ds.issue(*r0[k]); k += 1
    r1 = reads(1, 1); k = 0
    p.I(f's_add_u32 s34, s34, {U_STAGE}', f's_cmp_eq_u32 s34, {U_NS*U_STAGE}', 's_cselect_b32 s34, 0, s34')
    for mi, (m, fb, db) in enumerate(mfmas(0)):
        for _ in range(2 if mi < 4 else 1):
            if k < len(r1): ds.issue(*r1[k]); k += 1
        ds.need((0, 'A', fb), (0, 'B', db))
        p.I(m)
    while k < len(r1): ds.issue(*r1[k]); k += 1
    ds.drain()
    p.I('s_sub_u32 s35, s35, 1', 's_cmp_lg_u32 s35, 0', 's_cbranch_scc1 K2_UCL')
    for m in mfmas(1): p.I(m[0])
    p.I('s_lshl_b32 s30, s26, 2', 's_add_u32 s30, s30, s24', 's_cmp_ge_u32 s30, 54', 's_cbranch_scc1 K2_DONE')
    p.I('s_mul_i32 s31, s25, 54', 's_add_u32 s30, s30, s31', 's_mul_i32 s30, s30, 5120', f's_add_u32 s30, s30, {WS_UF}',
        'v_lshlrev_b32 v5, 4, v1')
    p.I('s_waitcnt vmcnt(0)')
    for fb in range(2):
        x = 116 + 2*fb; b = BIAS + 4*fb
        p.I(f'v_lshlrev_b32 v{b}, 16, v{x}', f'v_and_b32 v{b+1}, 0xffff0000, v{x}',
            f'v_lshlrev_b32 v{b+2}, 16, v{x+1}', f'v_and_b32 v{b+3}, 0xffff0000, v{x+1}')
    c0 = -2.0*0.7978845608028654*1.4426950408889634
    c1 = c0*0.044715
    C0, C1, ONE = 120, 122, 124
    p.I(f'v_mov_b32 v{C0}, {hexf(c0)}', f'v_mov_b32 v{C1}, {hexf(c1)}', f'v_mov_b32 v{ONE}, 1.0')
    pr = lambda r: f'v[{r}:{r+1}]'
    def gelu_pair(x, t, b):
        return [f'v_pk_add_f32 {pr(x)}, {pr(x)}, {pr(b)}',
                f'v_pk_mul_f32 {pr(t)}, {pr(x)}, {pr(x)}',
                f'v_pk_fma_f32 {pr(t)}, {pr(t)}, {pr(C1)}, {pr(C0)} op_sel_hi:[1,0,0]',
                f'v_pk_mul_f32 {pr(t)}, {pr(t)}, {pr(x)}',
                f'v_exp_f32 v{t}, v{t}', f'v_exp_f32 v{t+1}, v{t+1}',
                f'v_pk_add_f32 {pr(t)}, {pr(t)}, {pr(ONE)} op_sel_hi:[1,0]',
                f'v_rcp_f32 v{t}, v{t}', f'v_rcp_f32 v{t+1}, v{t+1}',
                f'v_pk_mul_f32 {pr(x)}, {pr(x)}, {pr(t)}']
    TMP = 48
    for db in range(5):
        streams = []
        for fb in range(2):
            for hp in range(2):
                x = ACC + (fb*5+db)*4 + 2*hp
                streams.append(gelu_pair(x, TMP + 2*(fb*2+hp) + 8*(db % 2), BIAS + 4*fb + 2*hp))
        for t in interleave(*streams): p.I(t)
        o = 64 + 4*(db % 3)
        for fb in range(2):
            x = ACC + (fb*5+db)*4
            p.I(f'v_cvt_pk_bf16_f32 v{o+2*fb}, v{x}, v{x+1}', f'v_cvt_pk_bf16_f32 v{o+2*fb+1}, v{x+2}, v{x+3}')
        if db == 4: p.I('s_add_u32 s30, s30, 4096')
        p.I(f'buffer_store_dwordx4 v[{o}:{o+3}], v5, s[16:19], s30 offen offset:{(db*1024) % 4096}')
    p.I('s_endpgm')

def gen_q(p):
    p.label('K2_Q')
    p.I('s_cmp_lt_u32 s24, 4', 's_cbranch_scc1 K2_QC')
    srd(p, 20, 8, SZ_WQKV)
    WSS, WQS = 's[16:19]', 's[20:23]'
    p.I('v_lshlrev_b32 v2, 4, v1')
    p.I('s_lshl_b32 s30, s25, 3',
        's_mul_i32 s31, s30, 20480',
        's_sub_u32 s32, s31, 20480',
        's_cmp_eq_u32 s25, 0',
        's_cselect_b32 s32, s31, s32',
        's_mul_i32 s33, s26, 160')
    if WS_XN:
        p.I(f's_add_u32 s31, s31, {WS_XN}', f's_add_u32 s32, s32, {WS_XN}')
    xitems = [Item(WSS, 'v2', 's32', 0, 0)] + [Item(WSS, 'v2', 's31', (i-1)*20480, i*1024) for i in range(1, 9)]
    def wvoff(j, dst):
        p.I(f'v_add_u32 v4, {64*j}, v1',
            f'v_mul_u32_u24 v5, 2185, v4',
            f'v_lshrrev_b32 v5, 16, v5',
            f'v_mul_u32_u24 v6, 30, v5',
            f'v_sub_u32 v6, v4, v6',
            f'v_mul_u32_u24 v7, 6554, v6',
            f'v_lshrrev_b32 v7, 16, v7',
            f'v_mul_u32_u24 v8, 10, v7',
            f'v_sub_u32 v6, v6, v8',
            f'v_mul_u32_u24 v7, 1280, v7',
            f'v_lshl_add_u32 v6, v6, 4, v7',
            f'v_bfe_u32 v7, v5, 2, 2',
            f'v_lshlrev_b32 v7, 3, v7',
            f'v_lshrrev_b32 v8, 4, v5',
            f'v_lshl_add_u32 v7, v8, 2, v7',
            f'v_and_b32 v8, 3, v5',
            f'v_add_u32 v7, v7, v8',
            f'v_mul_u32_u24 v7, 3840, v7',
            f'v_add_u32 v{dst}, v6, v7')
    assert all((q*2185) >> 16 == q//30 for q in range(960))
    witems = [Item(WQS, f'v{10+j}', 's33', 0, 9216 + j*1024) for j in range(15)]
    split = [xitems[0:6], xitems[6:9] + witems[0:3], witems[3:9], witems[9:15]]
    for L in range(4):
        if L < 3:
            p.I(f's_cmp_lg_u32 s24, {4+L}', f's_cbranch_scc1 K2_QL{L}_NEXT')
        for it in split[L]:
            if it.srd == WQS: wvoff(int(it.voff[1:]) - 10, int(it.voff[1:]))
        gen_loader(p, f'K2_QL{L}', [(Q_N, split[L], [('s31', 1024), ('s32', 1024), ('s33', 32*3840)])], Q_NS, Q_STAGE, 's34', 's35', 's36')
        if L < 3: p.label(f'K2_QL{L}_NEXT')
    p.label('K2_QC')
    ACC = 8
    WS_ = [152, 168]
    XS = [[184, 188, 192], [196, 200, 204]]
    VX, VWQ, VWR = 2, 3, 4
    AX, AWQ, AWR = 208, 209, 210
    acc = lambda i, b: ACC + 16*i + 4*b
    p.I(f'v_lshlrev_b32 v{VX}, 4, v1',
        'v_lshrrev_b32 v5, 2, v1',
        'v_mul_u32_u24 v5, 480, v5',
        'v_and_b32 v6, 3, v1',
        's_mul_i32 s30, s24, 40',
        's_add_u32 s30, s30, 9216',
        'v_add_u32 v5, s30, v5',
        f'v_lshl_add_u32 v{VWQ}, v6, 3, v5',
        'v_min_u32 v6, 2, v6',
        'v_mul_u32_u24 v6, 160, v6',
        f'v_add3_u32 v{VWR}, v5, v6, 32')
    for r in range(ACC, ACC+144): p.I(f'v_mov_b32 v{r}, 0')
    for r in range(WS_[1], WS_[1]+16): p.I(f'v_mov_b32 v{r}, 0')
    for b in XS[1]:
        for r in range(b, b+4): p.I(f'v_mov_b32 v{r}, 0')
    p.I('s_mov_b32 s34, 0', f's_mov_b32 s35, {Q_N//2}')
    def mf(i, b, wset, xreg):
        c = acc(i, b); w = wset + 4*b
        if b == 3:
            return f'v_mfma_f32_16x16x32_bf16 v[{c}:{c+3}], v[{xreg}:{xreg+3}], v[{w}:{w+3}], v[{c}:{c+3}]'
        return f'v_mfma_f32_16x16x32_bf16 v[{c}:{c+3}], v[{w}:{w+3}], v[{xreg}:{xreg+3}], v[{c}:{c+3}]'
    def wreads(ws):
        out = []
        for b, (va, off) in enumerate(((AWQ, 0), (AWQ, 160), (AWR, 0), (AWQ, 320))):
            r = ws + 4*b
            out.append((f'ds_read_b64_tr_b16 v[{r}:{r+1}], v{va} offset:{off}', ('W', b)))
            out.append((f'ds_read_b64_tr_b16 v[{r+2}:{r+3}], v{va} offset:{off+7680}', ('W', b)))
        return out
    def xread(i, reg):
        return (f'ds_read_b128 v[{reg}:{reg+3}], v{AX} offset:{i*1024}', ('X', i))
    def stage(par):
        ds = DS(p)
        Nn, O = XS[par], XS[1-par]
        Wn, Wo = WS_[par], WS_[1-par]
        p.I('s_barrier',
            f'v_add_u32 v{AX}, s34, v{VX}', f'v_add_u32 v{AWQ}, s34, v{VWQ}', f'v_add_u32 v{AWR}, s34, v{VWR}')
        wr = wreads(Wn)
        head_reads = [wr[0], wr[1], xread(0, Nn[0]), wr[2], wr[3], wr[4], wr[5], xread(1, Nn[1]), wr[6], wr[7], xread(2, Nn[2])]
        k = 0
        for hi, i in enumerate((6, 7, 8)):
            for b in range(4):
                p.I(mf(i, b, Wo, O[hi]))
                if k < len(head_reads): ds.issue(*head_reads[k]); k += 1
        ds.issue(*xread(3, O[0]))
        p.I(f's_add_u32 s34, s34, {Q_STAGE}', f's_cmp_eq_u32 s34, {Q_NS*Q_STAGE}', 's_cselect_b32 s34, 0, s34')
        src = [Nn[0], Nn[1], Nn[2], O[0], O[1], O[2]]
        later = {0: [xread(4, O[1]), xread(5, O[2])], 1: [xread(6, Nn[0])], 2: [xread(7, Nn[1])], 3: [xread(8, Nn[2])]}
        for i in range(6):
            lat = list(later.get(i, []))
            for b in range(4):
                ds.need(('W', b), ('X', i))
                p.I(mf(i, b, Wn, src[i]))
                if lat and b >= 0:
                    ds.issue(*lat.pop(0))
        ds.drain()
    p.label('K2_QCL')
    stage(0)
    stage(1)
    p.I('s_sub_u32 s35, s35, 1', 's_cmp_lg_u32 s35, 0', 's_cbranch_scc1 K2_QCL')
    for hi, i in enumerate((6, 7, 8)):
        for b in range(4):
            p.I(mf(i, b, WS_[1], XS[1][hi]))
    pr = lambda r: f'v[{r}:{r+1}]'
    VP, VRP = 152, 170
    E2, ONES = 188, 192
    MSKP, MSKC = 196, 200
    MSKP1 = 204
    CS = 208
    p.I('v_and_b32 v5, 15, v1',
        'v_lshrrev_b32 v6, 4, v1',
        f'v_mov_b32 v7, {hexf(-1e30)}',
        f'v_mov_b32 v{CS}, {hexf((DH**-0.5)*1.4426950408889634)}')
    for r in range(4):
        p.I(f'v_lshl_add_u32 v210, v6, 2, {r}',
            'v_sub_u32 v211, v5, v210',
            'v_and_b32 v212, 1, v211',
            'v_cmp_eq_u32 s[40:41], 0, v212',
            'v_cmp_le_i32 s[42:43], 0, v211',
            'v_cmp_ge_i32 s[44:45], -2, v211',
            's_and_b64 s[42:43], s[42:43], s[40:41]',
            's_and_b64 s[44:45], s[44:45], s[40:41]',
            f'v_cndmask_b32 v{MSKC+r}, v7, 0, s[42:43]',
            f'v_cndmask_b32 v{MSKP+r}, v7, 0, s[44:45]')
    p.I('s_cmp_eq_u32 s25, 0', 's_cselect_b64 s[40:41], -1, 0')
    for r in range(4):
        p.I(f'v_cndmask_b32 v{MSKP1+r}, v{MSKP+r}, v7, s[40:41]')
    for r in range(4): p.I(f'v_mov_b32 v{ONES+r}, 0x3f803f80')
    p.I(f'v_mov_b32 v{E2}, 0', f'v_mov_b32 v{E2+1}, 0',
        'v_mov_b32 v210, 0x3f80', 'v_mov_b32 v211, 0x3f800000',
        f'v_mov_b32 v{E2+2}, 0', f'v_mov_b32 v{E2+3}, 0',
        'v_cmp_eq_u32 vcc, 32, v1', f'v_cndmask_b32 v{E2+2}, v{E2+2}, v210, vcc',
        'v_cmp_eq_u32 vcc, 33, v1', f'v_cndmask_b32 v{E2+2}, v{E2+2}, v211, vcc',
        'v_cmp_eq_u32 vcc, 34, v1', f'v_cndmask_b32 v{E2+3}, v{E2+3}, v210, vcc',
        'v_cmp_eq_u32 vcc, 35, v1', f'v_cndmask_b32 v{E2+3}, v{E2+3}, v211, vcc')
    p.I('s_mov_b32 s46, 0', 's_mov_b32 s47, 0xffff0000')
    p.I('s_lshl_b32 s30, s26, 2', 's_add_u32 s30, s30, s24',
        's_lshr_b32 s31, s30, 3',
        's_and_b32 s30, s30, 7',
        's_mul_i32 s31, s31, 5',
        's_mul_i32 s32, s25, 160',
        's_add_u32 s31, s31, s32',
        's_lshr_b32 s32, s30, 1', 's_add_u32 s32, s32, s31', 's_lshl_b32 s32, s32, 10',
        's_and_b32 s33, s30, 1', 's_lshl_b32 s33, s33, 3', 's_add_u32 s32, s32, s33',
        f's_add_u32 s32, s32, {WS_OF}',
        's_add_u32 s31, s31, 4', 's_lshl_b32 s31, s31, 10',
        's_and_b32 s33, s30, 3', 's_lshl_b32 s33, s33, 8', 's_add_u32 s31, s31, s33',
        's_lshr_b32 s33, s30, 2', 's_lshl_b32 s33, s33, 3', 's_add_u32 s31, s31, s33',
        f's_add_u32 s31, s31, {WS_OF}',
        'v_lshlrev_b32 v2, 4, v1',
        'v_mov_b32 v3, 0x10000000',
        'v_cmp_gt_u32 vcc, 16, v1',
        'v_cndmask_b32 v3, v3, v2, vcc')
    def stepA(i):
        Q, K, R, V = (acc(i, b) for b in range(4))
        o = []
        o += [f'v_cvt_pk_bf16_f32 v{Q}, v{Q}, v{Q+1}', f'v_cvt_pk_bf16_f32 v{Q+1}, v{Q+2}, v{Q+3}',
              f'v_cvt_pk_bf16_f32 v{Q+2}, v{R}, v{R+1}', f'v_cvt_pk_bf16_f32 v{Q+3}, v{R+2}, v{R+3}',
              f'v_cvt_pk_bf16_f32 v{K}, v{K}, v{K+1}', f'v_cvt_pk_bf16_f32 v{K+1}, v{K+2}, v{K+3}',
              f'v_cndmask_b32 v{Q+2}, v{Q+2}, 0, s[46:47]', f'v_cndmask_b32 v{Q+3}, v{Q+3}, 0, s[46:47]',
              f'v_mov_b32 v{K+2}, 0', f'v_mov_b32 v{K+3}, 0',
              f'v_cvt_pk_bf16_f32 v{VP+2*i}, v{V}, v{V+1}', f'v_cvt_pk_bf16_f32 v{VP+2*i+1}, v{V+2}, v{V+3}',
              f'v_permlane16_swap_b32 v{Q+2}, v{K+2}', f'v_permlane16_swap_b32 v{Q+3}, v{K+3}',
              f'v_mfma_f32_16x16x32_bf16 v[{R}:{R+3}], v[{Q}:{Q+3}], v[{E2}:{E2+3}], 0']
        return o
    def stepA2(i):
        R = acc(i, 2)
        return [f'v_cvt_pk_bf16_f32 v{VRP+2*i}, v{R}, v{R+1}', f'v_cvt_pk_bf16_f32 v{VRP+2*i+1}, v{R+2}, v{R+3}']
    for grp in ((0, 1, 2), (3, 4, 5), (6, 7, 8)):
        for t in interleave(*[stepA(i) for i in grp]): p.I(t)
    for i in range(9):
        for t in stepA2(i): p.I(t)
    def stepB(i, tset):
        Q = acc(i, 0); Kp = acc(i-1, 1); Kc = acc(i, 1)
        Sp = acc(i, 3); Sc = acc(i, 2)
        M, M2, PF, O0, O1, Lr = tset
        mp = MSKP1 if i == 1 else MSKP
        o = [f'v_mfma_f32_16x16x32_bf16 v[{Sp}:{Sp+3}], v[{Kp}:{Kp+3}], v[{Q}:{Q+3}], 0',
             f'v_mfma_f32_16x16x32_bf16 v[{Sc}:{Sc+3}], v[{Kc}:{Kc+3}], v[{Q}:{Q+3}], 0']
        for hp in range(2):
            o.append(f'v_pk_fma_f32 {pr(Sp+2*hp)}, {pr(Sp+2*hp)}, {pr(CS)}, {pr(mp+2*hp)} op_sel_hi:[1,0,1]')
        for hp in range(2):
            o.append(f'v_pk_fma_f32 {pr(Sc+2*hp)}, {pr(Sc+2*hp)}, {pr(CS)}, {pr(MSKC+2*hp)} op_sel_hi:[1,0,1]')
        o += [f'v_max3_f32 v{M}, v{Sp}, v{Sp+1}, v{Sp+2}',
              f'v_max3_f32 v{M2}, v{Sp+3}, v{Sc}, v{Sc+1}',
              f'v_max3_f32 v{M}, v{M}, v{Sc+2}, v{Sc+3}',
              f'v_max_f32 v{M}, v{M}, v{M2}',
              f'v_mov_b32 v{M2}, v{M}',
              f'v_permlane32_swap_b32 v{M}, v{M2}',
              f'v_max_f32 v{M}, v{M}, v{M2}',
              f'v_mov_b32 v{M2}, v{M}',
              f'v_permlane16_swap_b32 v{M}, v{M2}',
              f'v_max_f32 v{M}, v{M}, v{M2}',
              f'v_sub_f32 v{M}, 0, v{M}']
        for base in (Sp, Sc):
            for hp in range(2):
                o.append(f'v_pk_add_f32 {pr(base+2*hp)}, {pr(base+2*hp)}, {pr(M)} op_sel_hi:[1,0]')
        for base in (Sp, Sc):
            for r in range(4):
                o.append(f'v_exp_f32 v{base+r}, v{base+r}')
        o += [f'v_cvt_pk_bf16_f32 v{PF}, v{Sp}, v{Sp+1}', f'v_cvt_pk_bf16_f32 v{PF+1}, v{Sp+2}, v{Sp+3}',
              f'v_cvt_pk_bf16_f32 v{PF+2}, v{Sc}, v{Sc+1}', f'v_cvt_pk_bf16_f32 v{PF+3}, v{Sc+2}, v{Sc+3}']
        vp = VP + 2*(i-1); vr = VRP + 2*(i-1)
        o += [f'v_mfma_f32_16x16x32_bf16 v[{Lr}:{Lr+3}], v[{ONES}:{ONES+3}], v[{PF}:{PF+3}], 0',
              f'v_mfma_f32_16x16x32_bf16 v[{O0}:{O0+3}], v[{vp}:{vp+3}], v[{PF}:{PF+3}], 0',
              f'v_mfma_f32_16x16x32_bf16 v[{O1}:{O1+3}], v[{vr}:{vr+3}], v[{PF}:{PF+3}], 0',
              f'v_rcp_f32 v{Lr}, v{Lr}']
        for base in (O0, O1):
            for hp in range(2):
                o.append(f'v_pk_mul_f32 {pr(base+2*hp)}, {pr(base+2*hp)}, {pr(Lr)} op_sel_hi:[1,0]')
        o += [f'v_cvt_pk_bf16_f32 v{O0}, v{O0}, v{O0+1}', f'v_cvt_pk_bf16_f32 v{O0+1}, v{O0+2}, v{O0+3}',
              f'v_cvt_pk_bf16_f32 v{O1}, v{O1}, v{O1+1}', f'v_cvt_pk_bf16_f32 v{O1+1}, v{O1+2}, v{O1+3}']
        so = (i-1)*20480
        o += [f's_add_u32 s{48+2*(i%2)}, s32, {so}', f's_add_u32 s{49+2*(i%2)}, s31, {so}',
              f'buffer_store_dwordx2 v[{O0}:{O0+1}], v2, s[16:19], s{48+2*(i%2)} offen',
              f'buffer_store_dwordx2 v[{O1}:{O1+1}], v3, s[16:19], s{49+2*(i%2)} offen']
        return o
    ts = [(212, 213, 216, 220, 224, 228), (214, 215, 232, 236, 240, 244)]
    for i in range(1, 9, 2):
        for t in interleave(stepB(i, ts[0]), stepB(i+1, ts[1])): p.I(t)
    p.I('s_endpgm')

def gen_k2(name='mid_kernel'):
    p = Prog()
    p.raw(kernel_header(name))
    p.I(f's_cmp_ge_u32 s2, {K2_GRID}',
        's_cbranch_scc1 K2_DONE',
        f's_load_dwordx4 s[4:7], s[0:1], {KA_W1}',
        f's_load_dwordx2 s[8:9], s[0:1], {KA_WQKV}',
        f's_load_dwordx2 s[12:13], s[0:1], {KA_WS}',
        'v_lshrrev_b32 v1, 6, v0',
        'v_readfirstlane_b32 s24, v1',
        'v_and_b32 v1, 63, v0',
        's_and_b32 s27, s2, 7',
        's_lshr_b32 s28, s2, 3',
        's_waitcnt lgkmcnt(0)')
    srd(p, 16, 12, WS_END)
    p.I('s_cmp_ge_u32 s28, 16', 's_cbranch_scc1 K2_ISU')
    p.I('s_lshr_b32 s25, s27, 1', 's_lshl_b32 s25, s25, 2', 's_and_b32 s29, s28, 3', 's_add_u32 s25, s25, s29',
        's_and_b32 s26, s27, 1', 's_lshl_b32 s26, s26, 2', 's_lshr_b32 s29, s28, 2', 's_add_u32 s26, s26, s29',
        's_branch K2_Q')
    p.label('K2_ISU')
    p.I('s_sub_u32 s28, s28, 16', 's_and_b32 s25, s28, 7', 's_lshr_b32 s28, s28, 3', 's_lshl_b32 s28, s28, 3',
        's_add_u32 s26, s27, s28', 's_cmp_ge_u32 s26, 14', 's_cbranch_scc1 K2_DONE')
    gen_u(p)
    gen_q(p)
    p.label('K2_DONE')
    p.I('s_endpgm')
    return p.finalize(), kernel_desc(name, 256, 64)

if __name__ == '__main__':
    t, d = gen_k2()
    print(t); print(d)
```

```python
from common import *
from ring import *

K3_GRID = 256
K3_BLOCK = 512
K3_NS = 8
K3_STAGE = 18432
K3_LDS = K3_NS * K3_STAGE
NO, NY = 10, 27

def gen_k3(name='final_kernel'):
    p = Prog()
    p.raw(kernel_header(name))
    p.I(f's_cmp_ge_u32 s2, {K3_GRID}',
        's_cbranch_scc1 K3_DONE',
        f's_load_dwordx2 s[4:5], s[0:1], {KA_X}',
        f's_load_dwordx2 s[6:7], s[0:1], {KA_W2}',
        f's_load_dwordx4 s[8:11], s[0:1], {KA_B2}',
        f's_load_dwordx2 s[12:13], s[0:1], {KA_WS}',
        'v_lshrrev_b32 v1, 6, v0',
        'v_readfirstlane_b32 s24, v1',
        'v_and_b32 v1, 63, v0',
        's_and_b32 s25, s2, 7',
        's_lshr_b32 s26, s2, 3',
        's_lshr_b32 s27, s25, 1',
        's_lshl_b32 s27, s27, 3',
        's_and_b32 s28, s26, 7',
        's_add_u32 s27, s27, s28',
        's_and_b32 s28, s25, 1',
        's_lshl_b32 s28, s28, 2',
        's_lshr_b32 s29, s26, 3',
        's_add_u32 s28, s28, s29',
        's_waitcnt lgkmcnt(0)')
    srd(p, 16, 12, WS_END)
    p.I('s_cmp_lt_u32 s24, 4', 's_cbranch_scc1 K3_CONS')
    srd(p, 20, 6, SZ_W2)
    p.I('v_lshlrev_b32 v2, 4, v1')
    p.I('v_lshrrev_b32 v3, 3, v1',
        'v_bfe_u32 v4, v1, 4, 2',
        'v_lshlrev_b32 v4, 1, v4',
        'v_and_b32 v5, 7, v1',
        'v_xor_b32 v4, v4, v5',
        'v_lshlrev_b32 v4, 4, v4',
        'v_lshl_add_u32 v3, v3, 12, v4')
    WSS, W2S = 's[16:19]', 's[20:23]'
    p.I('s_mul_i32 s30, s28, 102400',
        f's_add_u32 s30, s30, {WS_WOF}',
        's_mul_i32 s31, s28, 276480',
        f's_add_u32 s31, s31, {WS_UF}',
        's_mul_i32 s32, s27, 81920',
        f's_add_u32 s32, s32, {WS_OF}',
        's_lshl_b32 s33, s27, 7')
    for L in range(4):
        lab = f'K3_LD{L}'
        if L < 3:
            p.I(f's_cmp_lg_u32 s24, {4+L}', f's_cbranch_scc1 K3_LD{L}_NEXT')
        if L < 2:
            itO = [Item(WSS, 'v2', 's30', L*5120 + m*1024, L*5120 + m*1024) for m in range(5)]
            itY = [Item(WSS, 'v2', 's31', L*5120 + m*1024, L*5120 + m*1024) for m in range(5)]
            phases = [(NO, itO, [('s30', 10240)]), (NY, itY, [('s31', 10240)])]
        else:
            e = L - 2
            itO = [Item(WSS, 'v2', 's32', w*20480 + e*1024, 10240 + e*4096 + w*1024) for w in range(4)]
            itY = [Item(W2S, 'v3', 's33', (32*e + 8*m)*4096, 10240 + e*4096 + m*1024) for m in range(4)]
            phases = [(NO, itO, [('s32', 2048)]), (NY, itY, [('s33', 64*4096)])]
        gen_loader(p, lab, phases, K3_NS, K3_STAGE, 's34', 's35', 's36')
        if L < 3: p.label(f'K3_LD{L}_NEXT')
    p.label('K3_CONS')
    ACC = 8; SET = [28, 52]
    XR = 76; B2 = 86
    VA, VB, VBY = 2, 3, 4
    srd(p, 20, 4, SZ_X)
    srd(p, 36, 8, S*2)
    srd(p, 40, 10, SZ_X)
    p.I('v_and_b32 v5, 15, v1',
        's_lshl_b32 s30, s27, 6',
        's_lshl_b32 s31, s24, 4',
        's_add_u32 s30, s30, s31',
        'v_add_u32 v5, s30, v5',
        'v_mul_u32_u24 v6, 1280, v5',
        'v_lshrrev_b32 v7, 4, v1',
        'v_lshl_add_u32 v6, v7, 3, v6',
        's_mul_i32 s31, s28, 160',
        'v_add_u32 v6, s31, v6',
        'v_lshlrev_b32 v5, 1, v5')
    for mb in range(5):
        p.I(f'buffer_load_dwordx2 v[{XR+2*mb}:{XR+2*mb+1}], v6, s[20:23], 0 offen offset:{32*mb}')
    p.I(f'buffer_load_ushort v{B2}, v5, s[36:39], 0 offen')
    p.I(f'v_lshlrev_b32 v{VA}, 4, v1',
        's_lshl_b32 s31, s24, 10',
        f'v_add_u32 v{VB}, s31, v{VA}',
        f'v_add_u32 v{VB}, 10240, v{VB}',
        'v_lshrrev_b32 v7, 2, v1',
        'v_bfe_u32 v5, v1, 3, 2',
        'v_xor_b32 v5, s24, v5',
        'v_lshlrev_b32 v5, 5, v5',
        'v_lshl_add_u32 v5, v7, 7, v5',
        'v_and_b32 v7, 3, v1',
        'v_lshl_add_u32 v5, v7, 3, v5',
        f'v_add_u32 v{VBY}, 10240, v5')
    for r in range(ACC, ACC+20): p.I(f'v_mov_b32 v{r}, 0')
    for r in range(SET[1], SET[1]+24): p.I(f'v_mov_b32 v{r}, 0')
    p.I('s_mov_b32 s34, 0')
    VA2, VB2 = 87, 88
    def mfmas(s):
        for mb in range(5):
            a = SET[s] + 4*mb; b = SET[s] + 20
            yield f'v_mfma_f32_16x16x32_bf16 v[{ACC+4*mb}:{ACC+4*mb+3}], v[{a}:{a+3}], v[{b}:{b+3}], v[{ACC+4*mb}:{ACC+4*mb+3}]'
    def reads(ds, s, e, phase):
        out = []
        b = SET[s] + 20
        if phase == 'O':
            out.append((f'ds_read_b128 v[{b}:{b+3}], v{VB2} offset:{e*4096}', (s, 'B')))
        else:
            out.append((f'ds_read_b64_tr_b16 v[{b}:{b+1}], v{VB2} offset:{e*4096}', (s, 'B')))
            out.append((f'ds_read_b64_tr_b16 v[{b+2}:{b+3}], v{VB2} offset:{e*4096+2048}', (s, 'B')))
        for mb in range(5):
            a = SET[s] + 4*mb
            out.append((f'ds_read_b128 v[{a}:{a+3}], v{VA2} offset:{e*5120+mb*1024}', (s, mb)))
        return out
    def stage(phase, cnt, lab):
        p.I(f's_mov_b32 s35, {cnt}')
        p.label(lab)
        ds = DS(p)
        p.I('s_barrier',
            f'v_add_u32 v{VA2}, s34, v{VA}',
            f'v_add_u32 v{VB2}, s34, v{VB if phase == "O" else VBY}')
        r0 = reads(ds, 0, 0, phase); m1 = list(mfmas(1))
        k = 0
        for mi, m in enumerate(m1):
            for _ in range(2 if mi < 2 else 1):
                if k < len(r0): ds.issue(*r0[k]); k += 1
            p.I(m)
        while k < len(r0): ds.issue(*r0[k]); k += 1
        r1 = reads(ds, 1, 1, phase)
        for t in r1: ds.issue(*t)
        p.I(f's_add_u32 s34, s34, {K3_STAGE}', f's_cmp_eq_u32 s34, {K3_LDS}', 's_cselect_b32 s34, 0, s34')
        for mb, m in enumerate(mfmas(0)):
            ds.need((0, 'B'), (0, mb))
            p.I(m)
        ds.drain()
        p.I('s_sub_u32 s35, s35, 1', 's_cmp_lg_u32 s35, 0', f's_cbranch_scc1 {lab}')
    stage('O', NO, 'K3_CO')
    stage('Y', NY, 'K3_CY')
    for m in mfmas(1): p.I(m)
    p.I('s_waitcnt vmcnt(0)',
        f'v_lshlrev_b32 v{B2}, 16, v{B2}')
    T = 28
    for mb in range(5):
        a = ACC + 4*mb; x = XR + 2*mb; t = T + 4*mb
        p.I(f'v_lshlrev_b32 v{t}, 16, v{x}', f'v_and_b32 v{t+1}, 0xffff0000, v{x}',
            f'v_lshlrev_b32 v{t+2}, 16, v{x+1}', f'v_and_b32 v{t+3}, 0xffff0000, v{x+1}')
        for r in range(4):
            p.I(f'v_add_f32 v{t+r}, v{t+r}, v{B2}')
    for mb in range(5):
        a = ACC + 4*mb; t = T + 4*mb
        for r in range(4):
            p.I(f'v_add_f32 v{t+r}, v{t+r}, v{a+r}')
        p.I(f'v_cvt_pk_bf16_f32 v{t}, v{t}, v{t+1}', f'v_cvt_pk_bf16_f32 v{t+1}, v{t+2}, v{t+3}',
            f'buffer_store_dwordx2 v[{t}:{t+1}], v6, s[40:43], 0 offen offset:{32*mb}')
    p.label('K3_DONE')
    p.I('s_endpgm')
    return p.finalize(), kernel_desc(name, 96, 64)

if __name__ == '__main__':
    t, d = gen_k3()
    print(t); print(d)
```

```python
from common import *

class Item:
    def __init__(self, srd, voff, srun, goff, lds_off):
        self.srd, self.voff, self.srun, self.goff, self.lds_off = srd, voff, srun, goff, lds_off

def gen_loader(p, pfx, phases, NS, stage_bytes, s_slot, s_tmp, s_cnt):
    D = len(phases[0][1])
    assert all(len(ph[1]) == D for ph in phases)
    N = sum(ph[0] for ph in phases)
    assert (NS - 1) * D <= 63
    ring = NS * stage_bytes
    def issue(items, adv):
        for it in items:
            p.I(f's_add_u32 m0, {s_slot}, {it.lds_off}')
            if it.goff:
                p.I(f's_add_u32 {s_tmp}, {it.srun}, {it.goff}')
                so = s_tmp
            else:
                so = it.srun
                p.I('s_nop 0')
            p.I(f'buffer_load_dwordx4 {it.voff}, {it.srd}, {so} offen lds')
        for (sr, st) in adv:
            p.I(f's_add_u32 {sr}, {sr}, {st}')
        p.I(f's_add_u32 {s_slot}, {s_slot}, {stage_bytes}',
            f's_cmp_eq_u32 {s_slot}, {ring}',
            f's_cselect_b32 {s_slot}, 0, {s_slot}')
    p.I(f's_mov_b32 {s_slot}, 0')
    j = 0; lab = 0
    for ph in phases:
        n, items, adv = ph[0], ph[1], ph[2]
        if len(ph) > 3:
            for t in ph[3]: p.I(t)
        npro = max(0, min(n, NS - 1 - j))
        nste = n - npro
        for cnt, steady in ((npro, False), (nste, True)):
            if cnt == 0: continue
            L = f'{pfx}_L{lab}'; lab += 1
            if cnt > 1:
                p.I(f's_mov_b32 {s_cnt}, {cnt}')
                p.label(L)
            if steady:
                p.I(f's_waitcnt vmcnt({(NS-2)*D})', 's_barrier')
            issue(items, adv)
            if cnt > 1:
                p.I(f's_sub_u32 {s_cnt}, {s_cnt}, 1', f's_cmp_lg_u32 {s_cnt}, 0', f's_cbranch_scc1 {L}')
        j += n
    for i in range(max(0, N - NS + 1), N):
        p.I(f's_waitcnt vmcnt({(N-1-i)*D})', 's_barrier')
    p.I('s_endpgm')

class DS:
    def __init__(self, p):
        self.p = p; self.q = []; self.done = 0
    def issue(self, text, tag):
        self.p.I(text); self.q.append(tag)
    def need(self, *tags):
        last = -1
        for t in tags:
            for k, x in enumerate(self.q):
                if x == t: last = max(last, k)
        if last < self.done: return
        n = len(self.q) - 1 - last
        n = min(n, 15)
        self.p.I(f's_waitcnt lgkmcnt({n})')
        self.done = len(self.q) - n
    def drain(self):
        if self.done < len(self.q):
            self.p.I('s_waitcnt lgkmcnt(0)')
        self.q = []; self.done = 0
```

```python
import sys, os
sys.path.insert(0, os.path.dirname(os.path.abspath(__file__)))
from common import *
import k1, k2, k3
NAME = 'parallel_sum__sliding_local_dilated__mixer_token_mlp__prompt'
def build():
    ref = open(os.path.join(os.path.dirname(os.path.abspath(__file__)), '..', 'cdna_kernels', NAME + '.s.ref')).read().split('\n')
    head = [l for l in ref if l.startswith(';') and '@launch' not in l and 'Override' not in l and 'grid=ceil' not in l]
    t1, d1 = k1.gen_k1('prep_kernel')
    t2, d2 = k2.gen_k2('mid_kernel')
    t3, d3 = k3.gen_k3('final_kernel')
    out = head + [
        f'; @launch kernel=prep_kernel grid=({k1.K1_GRID},1,1) block=({k1.K1_BLOCK},1,1) lds={k1.K1_LDS}',
        f'; @launch kernel=mid_kernel grid=({k2.K2_GRID},1,1) block=({k2.K2_BLOCK},1,1) lds={k2.K2_LDS}',
        f'; @launch kernel=final_kernel grid=({k3.K3_GRID},1,1) block=({k3.K3_BLOCK},1,1) lds={k3.K3_LDS}',
        '.amdgcn_target "amdgcn-amd-amdhsa--gfx950"', '.text', t1, t2, t3,
        '.section .rodata,"a"', '.p2align 6', d1, '.p2align 6', d2, '.p2align 6', d3, '']
    return '\n'.join(out)
if __name__ == '__main__':
    dst = sys.argv[1] if len(sys.argv) > 1 else os.path.join(os.path.dirname(os.path.abspath(__file__)), '..', 'cdna_kernels', NAME + '.s')
    open(dst, 'w').write(build())
    print('wrote', dst)
```

```python
import re

def _regs(tok):
    tok = tok.strip()
    neg = tok.lstrip('-')
    m = re.fullmatch(r'(?:abs\()?([vsa])(\d+)\)?', neg)
    if m:
        return [(m.group(1), int(m.group(2)))]
    m = re.fullmatch(r'([vsa])\[(\d+):(\d+)\]', neg)
    if m:
        return [(m.group(1), i) for i in range(int(m.group(2)), int(m.group(3)) + 1)]
    if neg in ('vcc', 'vcc_lo', 'vcc_hi'):
        return [('s', 'vcc')]
    if neg in ('exec', 'exec_lo', 'exec_hi'):
        return [('s', 'exec')]
    if neg == 'm0':
        return [('s', 'm0')]
    return []

TRANS = ('v_exp_f32', 'v_log_f32', 'v_rcp_f32', 'v_rsq_f32', 'v_sqrt_f32', 'v_sin_f32', 'v_cos_f32', 'v_rcp_iflag_f32')

class Ins:
    __slots__ = ('text', 'mn', 'ops', 'mods', 'cls', 'w', 'r', 'srcC', 'srcAB', 'passes', 'nop', 'label', 'target',
                 'dpp', 'trans', 'wide_store_data', 'lds_dma', 'is_perm', 'is_readlane', 'cndmask_mask', 'partial')
    def __init__(self, text):
        self.text = text
        self.label = None
        self.target = None
        self.w = []; self.r = []; self.srcC = []; self.srcAB = []
        self.passes = 0; self.nop = 0; self.dpp = False; self.trans = False
        self.wide_store_data = []; self.lds_dma = False; self.is_perm = False; self.is_readlane = False
        self.partial = False
        t = text.split(';')[0].strip()
        if t.endswith(':'):
            self.label = t[:-1]; self.cls = 'LABEL'; self.mn = None
            return
        if t.startswith('.') or not t:
            self.cls = 'DIR'; self.mn = None
            return
        parts = t.split(None, 1)
        mn = parts[0]; self.mn = mn
        rest = parts[1] if len(parts) > 1 else ''
        ops = []; cur = ''; depth = 0
        for ch in rest:
            if ch in '[(': depth += 1
            if ch in '])': depth -= 1
            if ch == ',' and depth == 0:
                ops.append(cur.strip()); cur = ''
            else:
                cur += ch
        if cur.strip(): ops.append(cur.strip())
        mods = ''
        if ops:
            last = ops[-1].split(None, 1)
            if len(last) > 1 and not last[0].endswith(('(',)):
                ops[-1] = last[0]; mods = last[1]
        self.ops = ops; self.mods = mods
        R = lambda i: _regs(ops[i]) if i < len(ops) else []
        allr = lambda a: [x for o in ops[a:] for x in _regs(o)]
        if mn.startswith('v_mfma'):
            self.cls = 'MFMA'
            self.w = R(0); self.srcAB = R(1) + R(2); self.srcC = R(3); self.r = self.srcAB + self.srcC
            self.passes = 8 if '32x32' in mn else 4
        elif mn.startswith('v_'):
            self.cls = 'VALU'
            base = mn.replace('_e32', '').replace('_e64', '').replace('_dpp', '').replace('_sdwa', '')
            self.trans = base in TRANS
            self.dpp = any(k in mods for k in ('quad_perm', 'row_', 'wave_'))
            self.partial = 'dst_sel' in mods
            if base.startswith('v_cmp'):
                self.w = R(0); self.r = allr(1)
            elif base in ('v_readfirstlane_b32', 'v_readlane_b32'):
                self.w = R(0); self.r = allr(1); self.is_readlane = True
            elif base.startswith(('v_add_co', 'v_sub_co', 'v_addc_co', 'v_subb_co', 'v_subrev_co')):
                self.w = R(0) + R(1); self.r = allr(2)
            elif 'permlane' in base:
                self.w = R(0) + R(1); self.r = R(0) + R(1); self.is_perm = True
            elif base.startswith(('v_fmac', 'v_pk_fmac', 'v_dot2c', 'v_writelane', 'v_mac')):
                self.w = R(0); self.r = allr(0)
            else:
                self.w = R(0); self.r = allr(1)
                if self.dpp: self.r = self.r + R(0)
        elif mn.startswith('ds_'):
            self.cls = 'DS'
            if mn.startswith(('ds_write', 'ds_add', 'ds_max', 'ds_min')) and 'rtn' not in mn:
                self.r = allr(0)
            else:
                self.w = R(0); self.r = allr(1)
        elif mn.startswith(('buffer_', 'global_')):
            self.cls = 'VMEM'
            if mn in ('buffer_inv', 'buffer_wbl2'):
                pass
            elif 'load' in mn:
                if re.search(r'\blds\b', mods) or 'load_lds' in mn:
                    self.lds_dma = True; self.r = allr(0) + [('s', 'm0')]
                else:
                    self.w = R(0); self.r = allr(1)
            elif 'store' in mn:
                self.r = allr(0)
                if mn.endswith(('x3', 'x4')):
                    self.wide_store_data = R(0) if mn.startswith('buffer_') else R(1)
            else:
                self.r = allr(0)
                if 'sc0' in mods: self.w = R(0) if mn.startswith('buffer_') else R(0)
        elif mn.startswith('s_'):
            self.cls = 'SALU'
            if mn == 's_nop':
                self.nop = int(ops[0], 0) + 1
            elif mn.startswith(('s_cmp', 's_bitcmp')):
                self.r = allr(0)
            elif mn in ('s_waitcnt', 's_barrier', 's_endpgm', 's_setprio', 's_sleep'):
                pass
            elif mn.startswith(('s_branch', 's_cbranch')):
                self.target = ops[0]
            elif 'saveexec' in mn:
                self.w = R(0) + [('s', 'exec')]; self.r = allr(1) + [('s', 'exec')]
            else:
                self.w = R(0); self.r = allr(1)
        else:
            raise ValueError('unknown instr ' + text)

    def states(self):
        if self.cls in ('LABEL', 'DIR'): return 0
        return self.nop if self.nop else 1

def need(P, C):
    n = 0
    Pw = set(P.w); Cr = set(C.r); Cw = set(C.w)
    vw = {x for x in Pw if x[0] == 'v'}
    sw = {x for x in Pw if x[0] == 's'}
    if P.cls == 'VALU':
        if C.cls == 'MFMA' and vw & Cr: n = max(n, 2)
        if C.cls == 'VALU':
            if sw & {x for x in Cr if x[0] == 's'}: n = max(n, 4 if C.is_readlane else 2)
            if C.is_readlane and vw & Cr: n = max(n, 1)
            if C.dpp and vw & Cr: n = max(n, 2)
            if C.is_perm and vw & Cr: n = max(n, 2)
            if P.trans and not C.trans and vw & Cr: n = max(n, 1)
            if P.trans and C.trans and vw & Cr: n = max(n, 1)
            if P.partial and vw & (Cr | Cw): n = max(n, 1)
            if ('s', 'exec') in Pw and C.dpp: n = max(n, 5)
        if C.cls == 'VMEM' and sw & Cr: n = max(n, 5)
        if C.cls == 'MFMA' and ('s', 'exec') in Pw: n = max(n, 4)
    if P.cls == 'MFMA':
        p4 = P.passes == 4
        D = set(P.w)
        if C.cls == 'MFMA':
            cc = set(C.srcC)
            if cc & D:
                if cc == D and C.passes == P.passes and sorted(C.srcC) == sorted(P.w): pass
                else: n = max(n, 6 if p4 else 10)
            if set(C.srcAB) & D: n = max(n, 8 if p4 else 12)
            if set(C.w) & D and not (cc & D): n = max(n, 8 if p4 else 12)
        elif C.cls in ('VALU', 'VMEM', 'DS'):
            if D & (Cr | Cw): n = max(n, 8 if p4 else 12)
        if C.cls == 'VALU' and set(P.srcC) & Cw: n = max(n, 3 if p4 else 7)
    if P.cls == 'SALU' and ('s', 'm0') in Pw and (C.lds_dma): n = max(n, 1)
    if P.cls == 'VMEM' and P.wide_store_data:
        d = set(P.wide_store_data)
        if d & Cw: n = max(n, 2 if C.cls in ('VALU', 'MFMA') else 1)
    return n

class Prog:
    def __init__(self):
        self.ins = []
    skip = None
    def I(self, *lines):
        for t in lines:
            for l in t.split('\n'):
                if l.strip():
                    if self.skip and l.strip().startswith(self.skip): continue
                    self.ins.append(Ins(l.strip()))
    def label(self, name):
        self.ins.append(Ins(name + ':'))
    def raw(self, text):
        i = Ins('.dir'); i.text = text; self.ins.append(i)
    def finalize(self, W=14):
        ins = self.ins
        labels = {x.label: k for k, x in enumerate(ins) if x.label}
        branches = {}
        for k, x in enumerate(ins):
            if x.target: branches.setdefault(x.target, []).append(k)
        extra = [0] * len(ins)
        ninserted = 0
        def scan(C, k, dist, seen, entry_branch=False):
            best = 0
            first = True
            while k >= 0 and dist <= W:
                x = ins[k]
                if x.label:
                    for b in branches.get(x.label, []):
                        key = (b, dist)
                        if key not in seen:
                            seen.add(key)
                            best = max(best, scan(C, b, dist, seen, True))
                    k -= 1
                    continue
                if x.cls == 'DIR':
                    k -= 1; continue
                if x.mn in ('s_branch', 's_endpgm') and not (first and entry_branch):
                    return best
                first = False
                nd = need(x, C)
                if nd > dist: best = max(best, nd - dist)
                dist += x.states() + extra[k]
                k -= 1
            return best
        for k, C in enumerate(ins):
            if C.cls in ('LABEL', 'DIR'): continue
            e = scan(C, k - 1, 0, set())
            if e > 0:
                extra[k] = e; ninserted += e
        out = []
        for k, x in enumerate(ins):
            e = extra[k]
            while e > 0:
                n = min(e, 16)
                out.append(f'  s_nop {n-1}')
                e -= n
            if x.label: out.append(x.text)
            elif x.cls == 'DIR': out.append(x.text)
            else: out.append('  ' + x.text)
        self.ninserted = ninserted
        return '\n'.join(out)
```

```python
from asm import Prog
S, D, F, H, DH = 2048, 640, 1728, 32, 20
KA_X, KA_WQKV, KA_WO, KA_BX, KA_W1, KA_B1, KA_W2, KA_B2, KA_OUT, KA_DBG, KA_WS = [8*i for i in range(11)]
WS_XN  = 0x000000
WS_HT  = 0x280000
WS_WOF = 0x500000
WS_UF  = 0x600000
WS_OF  = 0x880000
WS_FLAG = 0xB00000
WS_FQ = WS_FLAG
WS_FU = WS_FLAG + 16*128
WS_END = 0xB01000
SZ_X = S*D*2
SZ_WQKV = D*3*D*2
SZ_WO = D*D*2
SZ_W1 = S*F*2
SZ_W2 = F*S*2

def srd(p, r, lo, size):
    p.I(f's_mov_b32 s{r}, s{lo}',
        f's_and_b32 s{r+1}, s{lo+1}, 0xffff',
        f's_mov_b32 s{r+2}, {size}',
        f's_mov_b32 s{r+3}, 0x20000')

def kernel_header(name):
    return (f'.globl {name}\n.p2align 8\n.type {name},@function\n{name}:')

def kernel_desc(name, vgpr, sgpr=96):
    import os
    if os.environ.get('STAMP','0')=='1': sgpr=100; vgpr=max(vgpr,256)
    acc = (vgpr + 3)//4*4
    return f'''.amdhsa_kernel {name}
  .amdhsa_next_free_vgpr {vgpr}
  .amdhsa_next_free_sgpr {sgpr}
  .amdhsa_accum_offset {acc}
  .amdhsa_group_segment_fixed_size 0
  .amdhsa_kernarg_size 88
  .amdhsa_user_sgpr_count 2
  .amdhsa_user_sgpr_kernarg_segment_ptr 1
  .amdhsa_system_sgpr_workgroup_id_x 1
  .amdhsa_float_denorm_mode_32 3
.end_amdhsa_kernel'''

import os
STAMP = os.environ.get('STAMP', '0') == '1'
WS_STAMP = 0x1000000
DBGSTAMP = os.environ.get('DBGSTAMP', '0') == '1'
class Stamper:
    def __init__(self, p, kidx, base=70):
        self.p, self.kidx, self.base, self.n = p, kidx, base, 0
    def stamp(self):
        if not STAMP: return
        b = self.base + 2*self.n
        self.p.I(f's_memrealtime s[{b}:{b+1}]')
        c = 80 + 2*self.n
        self.p.I(f's_memtime s[{c}:{c+1}]')
        self.n += 1
        assert self.n <= 5
    def flush(self, slot, vtmp=(250, 251), wsptr=12, wait=True):
        if not STAMP: return
        p = self.p
        p.I('s_waitcnt lgkmcnt(0)')
        if DBGSTAMP:
            if slot == 0:
                lab = f'DBG{len(p.ins)}'
                base = {0: 0, 1: 5, 2: 9}[self.kidx]
                p.I(f's_load_dwordx2 s[92:93], s[0:1], {KA_DBG}', 's_waitcnt lgkmcnt(0)')
                if self.kidx: p.I('s_sub_u32 s92, s92, 512', 's_subb_u32 s93, s93, 0')
                p.I('s_and_b32 s93, s93, 0xffff', 's_mov_b32 s94, 64', 's_mov_b32 s95, 0x20000', f'v_mov_b32 v{vtmp[1]}, 0')
                p.I('s_cmp_lg_u32 s2, 0', f's_cbranch_scc1 {lab}_4')
                for i in range(min(self.n, 5)):
                    if base + i < 14:
                        p.I(f'v_mov_b32 v{vtmp[0]}, s{self.base+2*i}', f'buffer_store_dword v{vtmp[0]}, v{vtmp[1]}, s[92:95], 0 offen offset:{4*(base+i)}')
                p.label(f'{lab}_4')
                if self.kidx:
                    p.I('s_cmp_lg_u32 s2, 4', f's_cbranch_scc1 {lab}_E')
                    i = self.n - 1
                    p.I(f'v_mov_b32 v{vtmp[0]}, s{self.base+2*i}', f'buffer_store_dword v{vtmp[0]}, v{vtmp[1]}, s[92:95], 0 offen offset:{4*(13+self.kidx)}')
                    p.label(f'{lab}_E')
            if wait: p.I('s_waitcnt vmcnt(0)')
            return
        p.I(f's_add_u32 s92, s{wsptr}, {WS_STAMP + self.kidx*0x20000}', f's_addc_u32 s93, s{wsptr+1}, 0', 's_and_b32 s93, s93, 0xffff',
            's_mov_b32 s94, 0x20000', 's_mov_b32 s95, 0x20000')
        p.I('s_lshl_b32 s96, s2, 8', f's_add_u32 s96, s96, {slot*64}')
        for i in range(self.n):
            b = self.base + 2*i
            p.I(f'v_mov_b32 v{vtmp[0]}, s{b}', f'v_mov_b32 v{vtmp[1]}, 0',
                f'buffer_store_dword v{vtmp[0]}, v{vtmp[1]}, s[92:95], s96 offen offset:{4*i}',
                f'v_mov_b32 v{vtmp[0]}, s{80+2*i}',
                f'buffer_store_dword v{vtmp[0]}, v{vtmp[1]}, s[92:95], s96 offen offset:{32+4*i}')
        if wait: p.I('s_waitcnt vmcnt(0)')

def opt(name, default):
    v = os.environ.get(name)
    if v is None: return default
    return type(default)(v)
PF_W1_ROWS = opt('PF_W1_ROWS', 2048)
PF_WQ = opt('PF_WQ', 1)
PF_W2_ROWS = opt('PF_W2_ROWS', 1728)
PF_AUX = opt('PF_AUX', '')
NT_H = opt('NT_H', '')
NT_W1 = opt('NT_W1', '')
NT_XN = opt('NT_XN', '')
NT_WQ = opt('NT_WQ', '')
NT_U = opt('NT_U', '')
NT_O = opt('NT_O', '')
NT_W2 = opt('NT_W2', '')
NT_WO = opt('NT_WO', '')
NOCOMP = opt('NOCOMP', 0)
ROLL_U = opt('ROLL_U', 0)
ROLL_Y = opt('ROLL_Y', 0)
PF_CODE = opt('PF_CODE', 1)
FUSE = opt('FUSE', 1)
HAND = 'sc1' if FUSE else ''
LDS_CNT = 163840 - 64
PF_W2_P1 = opt('PF_W2_P1', 0)
```

```python
from common import *

NLN = 256
NPREP = 80
K1_GRID = NLN + NPREP
K1_BLOCK = 128
K1_LDS = 2*5120

def dpp_allreduce16(p, regs):
    for sh in (8, 4, 2, 1):
        for r in regs:
            p.I(f'v_add_f32_dpp v{r}, v{r}, v{r} row_ror:{sh} row_mask:0xf bank_mask:0xf')

def gen_k1(name='prep_kernel'):
    p = Prog()
    p.raw(kernel_header(name))
    st = Stamper(p, 0); st.stamp()
    p.I(f's_cmp_ge_u32 s2, {K1_GRID}',
        's_cbranch_scc1 K1_DONE',
        f's_load_dwordx2 s[4:5], s[0:1], {KA_X}',
        f's_load_dwordx2 s[6:7], s[0:1], {KA_WO}',
        f's_load_dwordx2 s[8:9], s[0:1], {KA_WS}',
        f's_load_dwordx2 s[10:11], s[0:1], {KA_W1}',
        f's_load_dwordx2 s[40:41], s[0:1], {KA_WQKV}',
        'v_lshrrev_b32 v1, 6, v0',
        'v_readfirstlane_b32 s24, v1',
        'v_and_b32 v1, 63, v0',
        f's_cmp_ge_u32 s2, {NLN}',
        's_cbranch_scc1 K1_PREP')
    p.I('v_and_b32 v2, 15, v1',
        'v_lshrrev_b32 v3, 4, v1',
        's_lshl_b32 s25, s2, 3',
        's_lshl_b32 s26, s24, 2',
        's_add_u32 s25, s25, s26',
        'v_add_u32 v3, s25, v3',
        'v_mul_u32_u24 v4, 1280, v3',
        'v_lshl_add_u32 v4, v2, 4, v4',
        's_waitcnt lgkmcnt(0)')
    srd(p, 12, 4, SZ_X)
    srd(p, 16, 8, WS_END)
    IN = 8; Fv = 28; T = 92
    for i in range(5):
        p.I(f'buffer_load_dwordx4 v[{IN+4*i}:{IN+4*i+3}], v4, s[12:15], 0 offen offset:{i*256}')
    NT_ = max(3, (PF_W1_ROWS + 511) // 512)
    p.I('s_and_b32 s42, s2, 7', 's_lshr_b32 s43, s2, 3', 's_lshl_b32 s43, s43, 1', 's_add_u32 s43, s43, s24',
        's_cmp_lt_u32 s42, 4', 's_cbranch_scc1 K1_PFQ')
    srd(p, 20, 10, min(SZ_W1, PF_W1_ROWS*3456))
    p.I('s_sub_u32 s42, s42, 4', 's_lshl_b32 s44, s42, 10', 's_cmp_eq_u32 s42, 3', 's_cselect_b32 s44, 2816, s44',
        'v_lshrrev_b32 v117, 3, v1', 'v_mul_u32_u24 v117, 3456, v117', 'v_and_b32 v118, 7, v1', 'v_lshl_add_u32 v117, v118, 7, v117',
        f's_mul_i32 s45, s43, {8*3456}', 's_add_u32 s44, s44, s45', f's_mov_b32 s46, {512*3456}', 's_branch K1_PFGO')
    p.label('K1_PFQ')
    srd(p, 20, 40, SZ_WQKV if PF_WQ else 0)
    p.I('s_and_b32 s42, s42, 1', 's_mul_i32 s44, s42, 640',
        'v_lshrrev_b32 v117, 4, v1', 'v_mul_u32_u24 v117, 3840, v117', 'v_and_b32 v118, 15, v1', 'v_min_u32 v118, 14, v118',
        'v_mul_u32_u24 v119, 52, v118', 'v_lshrrev_b32 v119, 8, v119',
        'v_mul_u32_u24 v6, 5, v119', 'v_sub_u32 v118, v118, v6',
        'v_mul_u32_u24 v119, 1280, v119', 'v_lshl_add_u32 v118, v118, 7, v119', 'v_add_u32 v117, v117, v118',
        f's_mul_i32 s45, s43, {4*3840}', 's_add_u32 s44, s44, s45', f's_mov_b32 s46, {256*3840}')
    p.label('K1_PFGO')
    for i in range(NT_):
        p.I(f'buffer_load_dword v118, v117, s[20:23], s44 offen {PF_AUX}', 's_add_u32 s44, s44, s46')
    p.I('v_lshrrev_b32 v5, 4, v3',
        'v_mul_u32_u24 v5, 20480, v5',
        'v_and_b32 v6, 15, v3',
        'v_lshl_add_u32 v5, v6, 4, v5',
        'v_lshrrev_b32 v6, 2, v2',
        'v_lshl_add_u32 v5, v6, 10, v5',
        'v_and_b32 v6, 3, v2',
        'v_lshl_add_u32 v5, v6, 8, v5')
    if WS_XN: p.I(f'v_add_u32 v5, {WS_XN}, v5')
    HO = 112
    p.I('v_mul_u32_u24 v7, 160, v3', f'v_add_u32 v7, {WS_HT}, v7', 's_mov_b32 s27, 327680')
    for i in range(5):
        p.I(f'v_add_u32 v6, {16*i}, v2',
            f'v_mul_u32_u24 v68, 6554, v6',
            f'v_lshrrev_b32 v68, 16, v68',
            f'v_mul_u32_u24 v69, 10, v68',
            f'v_sub_u32 v6, v6, v69',
            f'v_mul_lo_u32 v68, v68, s27',
            f'v_lshl_add_u32 v68, v6, 4, v68',
            f'v_add_u32 v{HO+i}, v68, v7')
    for i in range(1, 5):
        p.I(f's_mov_b32 s{30+i}, {i*4096}')
    p.I('v_mov_b32 v70, 0x3acccccd')
    st.stamp()
    for i in range(5):
        p.I(f's_waitcnt vmcnt({4-i+NT_})')
        for j in range(4*i, 4*i+4):
            p.I(f'v_lshlrev_b32 v{Fv+2*j}, 16, v{IN+j}',
                f'v_and_b32 v{Fv+2*j+1}, 0xffff0000, v{IN+j}')
    st.stamp()
    pr = lambda r: f'v[{r}:{r+1}]'
    def sum_chain(dst4, fma=False):
        for c in range(4):
            a = dst4 + 2*c
            if fma:
                p.I(f'v_pk_mul_f32 {pr(a)}, {pr(Fv+2*c)}, {pr(Fv+2*c)}')
            else:
                p.I(f'v_pk_add_f32 {pr(a)}, {pr(Fv+2*c)}, {pr(Fv+2*(c+4))}')
        start = 4 if fma else 8
        for j in range(start, 20):
            a = dst4 + 2*(j % 4)
            if fma: p.I(f'v_pk_fma_f32 {pr(a)}, {pr(Fv+2*j)}, {pr(Fv+2*j)}, {pr(a)}')
            else:   p.I(f'v_pk_add_f32 {pr(a)}, {pr(a)}, {pr(Fv+2*j)}')
        p.I(f'v_pk_add_f32 {pr(dst4)}, {pr(dst4)}, {pr(dst4+2)}',
            f'v_pk_add_f32 {pr(dst4+4)}, {pr(dst4+4)}, {pr(dst4+6)}',
            f'v_pk_add_f32 {pr(dst4)}, {pr(dst4)}, {pr(dst4+4)}',
            f'v_add_f32 v{dst4}, v{dst4}, v{dst4+1}')
    sum_chain(T)
    dpp_allreduce16(p, [T])
    p.I(f'v_mul_f32 v{T}, v70, v{T}', f'v_sub_f32 v100, 0, v{T}')
    for j in range(20):
        p.I(f'v_pk_add_f32 {pr(Fv+2*j)}, {pr(Fv+2*j)}, v[100:101] op_sel_hi:[1,0]')
    sum_chain(T, fma=True)
    dpp_allreduce16(p, [T])
    p.I(f'v_mov_b32 v71, 0x3727c5ac',
        f'v_fma_f32 v{T}, v{T}, v70, v71',
        f'v_rsq_f32 v102, v{T}')
    for j in range(20):
        p.I(f'v_pk_mul_f32 {pr(Fv+2*j)}, {pr(Fv+2*j)}, v[102:103] op_sel_hi:[1,0]')
    for j in range(20):
        p.I(f'v_cvt_pk_bf16_f32 v{IN+j}, v{Fv+2*j}, v{Fv+2*j+1}')
    for i in range(5):
        so = '0' if i == 0 else f's{30+i}'
        p.I(f'buffer_store_dwordx4 v[{IN+4*i}:{IN+4*i+3}], v5, s[16:19], {so} offen')
    T2 = 104
    sum_chain(T)
    sum_chain(T2, fma=True)
    dpp_allreduce16(p, [T, T2])
    p.I(f'v_mul_f32 v{T}, v70, v{T}',
        f'v_fma_f32 v{T2}, v{T2}, v70, v71',
        f'v_fma_f32 v{T2}, -v{T}, v{T}, v{T2}',
        f'v_rsq_f32 v102, v{T2}',
        f'v_mul_f32 v100, v{T}, v102',
        f'v_sub_f32 v100, 0, v100')
    for j in range(20):
        p.I(f'v_pk_fma_f32 {pr(Fv+2*j)}, {pr(Fv+2*j)}, v[102:103], v[100:101] op_sel_hi:[1,0,0]')
    HP = 72
    for j in range(20):
        p.I(f'v_cvt_pk_bf16_f32 v{HP+j}, v{Fv+2*j}, v{Fv+2*j+1}')
    for i in range(5):
        p.I(f'buffer_store_dwordx4 v[{HP+4*i}:{HP+4*i+3}], v{HO+i}, s[16:19], 0 offen')
    if STAMP:
        st.stamp(); p.I('s_waitcnt vmcnt(0)'); st.stamp(); p.I('s_cmp_lg_u32 s24, 0', 's_cbranch_scc1 K1_DONE'); st.flush(0, wsptr=8)
    p.I('s_endpgm')
    p.label('K1_PREP')
    if FUSE:
        p.I(f's_cmp_lg_u32 s2, {NLN}', 's_cbranch_scc1 K1_NOZ', 's_waitcnt lgkmcnt(0)')
        srd(p, 16, 8, WS_END)
        p.I('v_lshlrev_b32 v2, 4, v0', f'v_add_u32 v2, {WS_FLAG}, v2', 'v_mov_b32 v4, 0', 'v_mov_b32 v5, 0', 'v_mov_b32 v6, 0', 'v_mov_b32 v7, 0',
            'buffer_store_dwordx4 v[4:7], v2, s[16:19], 0 offen', 'buffer_store_dwordx4 v[4:7], v2, s[16:19], 0 offen offset:2048')
        p.label('K1_NOZ')
    p.I(f's_sub_u32 s25, s2, {NLN}',
        's_lshl_b32 s25, s25, 1',
        's_add_u32 s25, s25, s24',
        's_and_b32 s26, s25, 7',
        's_lshr_b32 s27, s25, 3',
        's_mul_i32 s28, s27, 52',
        's_lshr_b32 s28, s28, 8',
        's_mul_i32 s29, s28, 5',
        's_sub_u32 s29, s27, s29',
        's_mul_i32 s30, s28, 160',
        's_mul_i32 s31, s29, 40',
        's_add_u32 s31, s31, s30',
        's_add_u32 s30, s30, 16',
        's_cmp_eq_u32 s29, 4',
        's_cselect_b32 s30, s30, s31',
        's_cselect_b32 s31, 80, 20',
        's_cselect_b32 s32, 20, 4',
        's_waitcnt lgkmcnt(0)')
    srd(p, 20, 6, SZ_WO)
    srd(p, 16, 8, WS_END)
    p.I('s_mul_i32 s33, s26, 160',
        's_mul_i32 s34, s24, 5120',
        's_movk_i32 s35, 1280')
    for j in range(5):
        p.I(f'v_add_u32 v2, {64*j}, v1',
            f'v_mul_u32_u24 v3, 6554, v2',
            f'v_lshrrev_b32 v3, 16, v3',
            f'v_mul_u32_u24 v4, 10, v3',
            f'v_sub_u32 v4, v2, v4',
            f'v_lshrrev_b32 v5, 4, v3',
            f'v_mul_lo_u32 v5, v5, s31',
            f'v_bfe_u32 v6, v3, 2, 2',
            f'v_mul_lo_u32 v6, v6, s32',
            f'v_and_b32 v7, 3, v3',
            f'v_add3_u32 v5, v5, v6, v7',
            f'v_add_u32 v5, s30, v5',
            f'v_mul_lo_u32 v5, v5, s35',
            f'v_lshl_add_u32 v5, v4, 4, v5',
            f's_add_u32 m0, s34, {j*1024}',
            f'buffer_load_dwordx4 v5, s[20:23], s33 offen lds')
    p.I('v_lshrrev_b32 v2, 2, v1',
        'v_mul_u32_u24 v2, 160, v2',
        'v_and_b32 v3, 3, v1',
        'v_lshl_add_u32 v2, v3, 3, v2',
        'v_add_u32 v2, s34, v2',
        'v_lshlrev_b32 v3, 4, v1',
        's_mul_i32 s36, s26, 20',
        's_add_u32 s36, s36, s27',
        's_mul_i32 s36, s36, 5120',
        f's_add_u32 s36, s36, {WS_WOF}',
        's_waitcnt vmcnt(0)')
    for mb in range(5):
        p.I(f'ds_read_b64_tr_b16 v[{8+4*mb}:{9+4*mb}], v2 offset:{32*mb}',
            f'ds_read_b64_tr_b16 v[{10+4*mb}:{11+4*mb}], v2 offset:{32*mb+2560}')
    for mb in range(5):
        p.I(f's_waitcnt lgkmcnt({8-2*mb})')
        off = mb*1024
        if off < 4096:
            p.I(f'buffer_store_dwordx4 v[{8+4*mb}:{11+4*mb}], v3, s[16:19], s36 offen offset:{off}')
        else:
            p.I(f's_add_u32 s36, s36, 4096', f'buffer_store_dwordx4 v[{8+4*mb}:{11+4*mb}], v3, s[16:19], s36 offen')
    p.label('K1_DONE')
    p.I('s_endpgm')
    return p.finalize(), kernel_desc(name, 120, 64)

if __name__ == '__main__':
    assert all((c*6554) >> 16 == c//10 for c in range(320))
    assert all((k*52) >> 8 == k//5 for k in range(20))
    t, d = gen_k1()
    print(t); print(d)
```

```python
from common import *
from ring import *
import k3
import struct

K2_GRID = 256
K2_BLOCK = 512
U_NS = 6
U_STAGE = 10240 + 16384
U_N = 32
Q_NS = 6
Q_STAGE = 9216 + 15360
Q_N = 20
K2_LDS = 163840 if FUSE else max(U_NS*U_STAGE, Q_NS*Q_STAGE)

def f2u(x): return struct.unpack('<I', struct.pack('<f', x))[0]
def hexf(x): return hex(f2u(x))

def interleave(*streams):
    out = []
    n = max(len(s) for s in streams)
    for i in range(n):
        for s in streams:
            if i < len(s): out.append(s[i])
    return out

def w2_touch_setup(p, vreg):
    if not PF_W2_P1: return
    srd(p, 88 if False else 64, k3.PW2, SZ_W2)
    p.I('s_lshr_b32 s68, s2, 3', 's_cmp_lt_u32 s68, 24', 's_cselect_b32 s69, 0, 2', 's_cmp_eq_u32 s24, 0', 's_cselect_b32 s69, s69, 2',
        f's_mul_i32 s68, s68, {8*4096}', 's_and_b32 s62, s2, 7', 's_lshr_b32 s62, s62, 1', 's_lshl_b32 s62, s62, 10', 's_add_u32 s68, s68, s62',
        f'v_lshrrev_b32 v{vreg}, 3, v1', f'v_lshlrev_b32 v{vreg}, 12, v{vreg}', f'v_and_b32 v{vreg+1}, 7, v1', f'v_lshl_add_u32 v{vreg}, v{vreg+1}, 7, v{vreg}')

def w2_touch(p, lab, vreg, scnt):
    if not PF_W2_P1: return
    p.I(f's_and_b32 s62, {scnt}, 1', 's_or_b32 s62, s62, s69', f's_cbranch_scc1 {lab}',
        f'buffer_load_dword v{vreg+1}, v{vreg}, s[64:67], s68 offen {PF_AUX}', f's_add_u32 s68, s68, {24*8*4096}')
    p.label(lab)

def p1_loader_end(p):
    p.I('s_barrier', 's_branch P3_ENTRY')

def w2_prefetch(p):
    if PF_W2_ROWS == 0: return
    lab = f'K2_PF{len(p.ins)}'
    srd(p, 40, 10, SZ_W2)
    p.I('s_lshr_b32 s44, s2, 3', 's_cmp_ge_u32 s44, 24', f's_cbranch_scc1 {lab}',
        's_lshl_b32 s44, s44, 2', 's_add_u32 s44, s44, s24', 's_sub_u32 s44, s44, 4',
        f's_mul_i32 s44, s44, {8*4096}',
        's_and_b32 s45, s2, 7', 's_lshr_b32 s45, s45, 1', 's_lshl_b32 s45, s45, 10', 's_add_u32 s44, s44, s45',
        'v_lshrrev_b32 v40, 3, v1', 'v_lshlrev_b32 v40, 12, v40', 'v_and_b32 v41, 7, v1', 'v_lshl_add_u32 v40, v41, 7, v40')
    for m in range((PF_W2_ROWS + 767) // 768):
        p.I(f'buffer_load_dword v41, v40, s[40:43], s44 offen {PF_AUX}', f's_add_u32 s44, s44, {768*4096}')
    p.label(lab)

def gen_u(p):
    st = Stamper(p, 1); stl = Stamper(p, 1)
    p.label('K2_U')
    p.I('s_cmp_lt_u32 s24, 4', 's_cbranch_scc1 K2_UC')
    srd(p, 20, 4, SZ_W1)
    WSS, W1S = 's[16:19]', 's[20:23]'
    p.I('v_lshlrev_b32 v2, 4, v1',
        'v_lshrrev_b32 v3, 3, v1',
        'v_bfe_u32 v4, v1, 4, 2',
        'v_lshlrev_b32 v4, 1, v4',
        'v_and_b32 v5, 7, v1',
        'v_xor_b32 v4, v4, v5',
        'v_lshlrev_b32 v4, 4, v4',
        'v_mul_u32_u24 v3, 3456, v3',
        'v_add_u32 v3, v3, v4',
        's_mul_i32 s30, s25, 327680',
        f's_add_u32 s30, s30, {WS_HT}',
        's_lshl_b32 s31, s26, 8')
    hitems = [Item(WSS, 'v2', 's30', j*1024, j*1024, NT_H) for j in range(10)]
    witems = [Item(W1S, 'v3', 's31', m*8*3456 + hf*128, 10240 + hf*8192 + m*1024, NT_W1) for hf in range(2) for m in range(8)]
    split = [hitems[0:5] + witems[0:2], hitems[5:10] + witems[2:4], witems[4:10], witems[10:16]]
    for L in range(4):
        if L < 3:
            p.I(f's_cmp_lg_u32 s24, {4+L}', f's_cbranch_scc1 K2_UL{L}_NEXT')
        gen_loader(p, f'K2_UL{L}', [(U_N, split[L], [('s30', 10240), ('s31', 64*3456)])], U_NS, U_STAGE, 's34', 's35', 's36', stl if L == 0 else None, tail=w2_prefetch, end=(p1_loader_end if FUSE else None))
        if L < 3: p.label(f'K2_UL{L}_NEXT')
    p.label('K2_UC')
    st.stamp()
    ACC = 8
    SET = [48, 76]
    VA0, VA1, VB = 2, 3, 4
    A0, A1, B_ = 104, 105, 106
    BIAS = 108
    srd(p, 20, 6, F*2)
    p.I('v_lshrrev_b32 v5, 4, v1',
        'v_lshlrev_b32 v5, 3, v5',
        's_lshl_b32 s30, s26, 8',
        's_lshl_b32 s31, s24, 6',
        's_add_u32 s30, s30, s31',
        f'buffer_load_dwordx2 v[116:117], v5, s[20:23], s30 offen',
        f'buffer_load_dwordx2 v[118:119], v5, s[20:23], s30 offen offset:32')
    p.I('v_lshrrev_b32 v7, 2, v1',
        'v_bfe_u32 v5, v1, 3, 2',
        's_and_b32 s30, s24, 1',
        's_lshl_b32 s30, s30, 1',
        'v_xor_b32 v5, s30, v5',
        'v_lshlrev_b32 v5, 5, v5',
        'v_lshl_add_u32 v5, v7, 7, v5',
        'v_and_b32 v6, 3, v1',
        'v_lshl_add_u32 v5, v6, 3, v5',
        's_lshr_b32 s30, s24, 1',
        's_lshl_b32 s30, s30, 13',
        's_add_u32 s30, s30, 10240',
        f'v_add_u32 v{VA0}, s30, v5',
        f'v_xor_b32 v{VA1}, 32, v{VA0}',
        'v_mul_u32_u24 v7, 160, v7',
        f'v_lshl_add_u32 v{VB}, v6, 3, v7')
    for r in range(ACC, ACC+40): p.I(f'v_mov_b32 v{r}, 0')
    for r in range(SET[1], SET[1]+28): p.I(f'v_mov_b32 v{r}, 0')
    p.I('s_mov_b32 s34, 0', f's_mov_b32 s35, {U_N}')
    w2_touch_setup(p, 128)
    PFD = PF_W1_ROWS // 64
    if ROLL_U:
        srd(p, 40, 4, SZ_W1)
        p.I('v_lshrrev_b32 v5, 4, v1', 'v_mul_u32_u24 v5, 64, v5',
            'v_bfe_u32 v6, v1, 1, 3', 'v_add_u32 v5, v5, v6',
            's_lshl_b32 s30, s25, 3', 'v_add_u32 v5, s30, v5',
            's_movk_i32 s30, 3456', 'v_mul_lo_u32 v5, v5, s30',
            'v_and_b32 v6, 1, v1', 'v_lshl_add_u32 v126, v6, 7, v5',
            's_lshl_b32 s44, s26, 8', f's_add_u32 s44, s44, {PFD*64*3456}',
            's_cmp_eq_u32 s24, 0', 's_cselect_b32 s45, 0, 4')
    def mfmas(s):
        out = []
        for db in range(5):
            for fb in range(2):
                a = SET[s] + 4*fb; b = SET[s] + 8 + 4*db; c = ACC + (fb*5+db)*4
                out.append((f'v_mfma_f32_16x16x32_bf16 v[{c}:{c+3}], v[{a}:{a+3}], v[{b}:{b+3}], v[{c}:{c+3}]', fb, db))
        return out
    def reads(s, e):
        out = []
        for fb in range(2):
            a = SET[s] + 4*fb; va = (A0, A1)[fb]
            out.append((f'ds_read_b64_tr_b16 v[{a}:{a+1}], v{va} offset:{e*4096}', (s, 'A', fb)))
            out.append((f'ds_read_b64_tr_b16 v[{a+2}:{a+3}], v{va} offset:{e*4096+2048}', (s, 'A', fb)))
        for db in range(5):
            b = SET[s] + 8 + 4*db
            out.append((f'ds_read_b64_tr_b16 v[{b}:{b+1}], v{B_} offset:{e*5120+db*32}', (s, 'B', db)))
            out.append((f'ds_read_b64_tr_b16 v[{b+2}:{b+3}], v{B_} offset:{e*5120+db*32+2560}', (s, 'B', db)))
        return out
    st.stamp()
    p.skip = {0: None, 1: ('v_mfma', 'ds_read'), 2: ('v_mfma',), 3: ('ds_read',)}[NOCOMP]
    p.label('K2_UCL')
    ds = DS(p)
    p.I('s_barrier',
        f'v_add_u32 v{A0}, s34, v{VA0}', f'v_add_u32 v{A1}, s34, v{VA1}', f'v_add_u32 v{B_}, s34, v{VB}')
    w2_touch(p, 'K2_UNOW2', 128, 's35')
    if ROLL_U:
        p.I('s_and_b32 s46, s35, 3', 's_or_b32 s46, s46, s45', 's_cbranch_scc1 K2_UNOPF',
            f'buffer_load_dword v127, v126, s[40:43], s44 offen {PF_AUX}', f's_add_u32 s44, s44, {4*64*3456}')
        p.label('K2_UNOPF')
    r0 = reads(0, 0); m1 = mfmas(1); k = 0
    for mi, m in enumerate(m1):
        for _ in range(2 if mi < 4 else 1):
            if k < len(r0): ds.issue(*r0[k]); k += 1
        p.I(m[0])
    while k < len(r0): ds.issue(*r0[k]); k += 1
    r1 = reads(1, 1); k = 0
    p.I(f's_add_u32 s34, s34, {U_STAGE}', f's_cmp_eq_u32 s34, {U_NS*U_STAGE}', 's_cselect_b32 s34, 0, s34')
    for mi, (m, fb, db) in enumerate(mfmas(0)):
        for _ in range(2 if mi < 4 else 1):
            if k < len(r1): ds.issue(*r1[k]); k += 1
        ds.need((0, 'A', fb), (0, 'B', db))
        p.I(m)
    while k < len(r1): ds.issue(*r1[k]); k += 1
    ds.drain()
    p.I('s_sub_u32 s35, s35, 1', 's_cmp_lg_u32 s35, 0', 's_cbranch_scc1 K2_UCL')
    p.skip = None
    if FUSE: p.I('s_barrier')
    for m in mfmas(1): p.I(m[0])
    st.stamp()
    p.I('s_lshl_b32 s30, s26, 2', 's_add_u32 s30, s30, s24', 's_cmp_ge_u32 s30, 54', 's_cbranch_scc1 K2_USKIP')
    p.I('s_mul_i32 s31, s25, 54', 's_add_u32 s30, s30, s31', 's_mul_i32 s30, s30, 5120', f's_add_u32 s30, s30, {WS_UF}',
        'v_lshlrev_b32 v5, 4, v1')
    p.I('s_waitcnt vmcnt(0)')
    for fb in range(2):
        x = 116 + 2*fb; b = BIAS + 4*fb
        p.I(f'v_lshlrev_b32 v{b}, 16, v{x}', f'v_and_b32 v{b+1}, 0xffff0000, v{x}',
            f'v_lshlrev_b32 v{b+2}, 16, v{x+1}', f'v_and_b32 v{b+3}, 0xffff0000, v{x+1}')
    c0 = -2.0*0.7978845608028654*1.4426950408889634
    c1 = c0*0.044715
    C0, C1, ONE = 120, 122, 124
    p.I(f'v_mov_b32 v{C0}, {hexf(c0)}', f'v_mov_b32 v{C1}, {hexf(c1)}', f'v_mov_b32 v{ONE}, 1.0')
    pr = lambda r: f'v[{r}:{r+1}]'
    def gelu_pair(x, t, b):
        return [f'v_pk_add_f32 {pr(x)}, {pr(x)}, {pr(b)}',
                f'v_pk_mul_f32 {pr(t)}, {pr(x)}, {pr(x)}',
                f'v_pk_fma_f32 {pr(t)}, {pr(t)}, {pr(C1)}, {pr(C0)} op_sel_hi:[1,0,0]',
                f'v_pk_mul_f32 {pr(t)}, {pr(t)}, {pr(x)}',
                f'v_exp_f32 v{t}, v{t}', f'v_exp_f32 v{t+1}, v{t+1}',
                f'v_pk_add_f32 {pr(t)}, {pr(t)}, {pr(ONE)} op_sel_hi:[1,0]',
                f'v_rcp_f32 v{t}, v{t}', f'v_rcp_f32 v{t+1}, v{t+1}',
                f'v_pk_mul_f32 {pr(x)}, {pr(x)}, {pr(t)}']
    TMP = 48
    for db in range(5):
        streams = []
        for fb in range(2):
            for hp in range(2):
                x = ACC + (fb*5+db)*4 + 2*hp
                streams.append(gelu_pair(x, TMP + 2*(fb*2+hp) + 8*(db % 2), BIAS + 4*fb + 2*hp))
        for t in interleave(*streams): p.I(t)
        o = 64 + 4*(db % 3)
        for fb in range(2):
            x = ACC + (fb*5+db)*4
            p.I(f'v_cvt_pk_bf16_f32 v{o+2*fb}, v{x}, v{x+1}', f'v_cvt_pk_bf16_f32 v{o+2*fb+1}, v{x+2}, v{x+3}')
        if db == 4: p.I('s_add_u32 s30, s30, 4096')
        p.I(f'buffer_store_dwordx4 v[{o}:{o+3}], v5, s[16:19], s30 offen offset:{(db*1024) % 4096} {HAND}')
    p.label('K2_USKIP')
    if FUSE:
        p.I('s_lshl_b32 s30, s25, 7', 's_lshl_b32 s31, s26, 2', 's_add_u32 s30, s30, s31', f's_add_u32 s30, s30, {WS_FU}')
        signal(p, 'K2_USIG', 4, 's30', 2, 's31')
    if STAMP:
        p.I('s_waitcnt vmcnt(0)'); st.stamp(); p.I('s_cmp_lg_u32 s24, 0', 's_cbranch_scc1 K2_UNOST'); st.flush(0, wait=not FUSE); p.label('K2_UNOST')
    p.I('s_branch P3_ENTRY' if FUSE else 's_endpgm')

def gen_q(p):
    st = Stamper(p, 1); stl = Stamper(p, 1)
    p.label('K2_Q')
    p.I('s_cmp_lt_u32 s24, 4', 's_cbranch_scc1 K2_QC')
    srd(p, 20, 8, SZ_WQKV)
    WSS, WQS = 's[16:19]', 's[20:23]'
    p.I('v_lshlrev_b32 v2, 4, v1')
    p.I('s_lshl_b32 s30, s25, 3',
        's_mul_i32 s31, s30, 20480',
        's_sub_u32 s32, s31, 20480',
        's_cmp_eq_u32 s25, 0',
        's_cselect_b32 s32, s31, s32',
        's_mul_i32 s33, s26, 160')
    if WS_XN:
        p.I(f's_add_u32 s31, s31, {WS_XN}', f's_add_u32 s32, s32, {WS_XN}')
    xitems = [Item(WSS, 'v2', 's32', 0, 0, NT_XN)] + [Item(WSS, 'v2', 's31', (i-1)*20480, i*1024, NT_XN) for i in range(1, 9)]
    def wvoff(j, dst):
        p.I(f'v_add_u32 v4, {64*j}, v1',
            f'v_mul_u32_u24 v5, 2185, v4',
            f'v_lshrrev_b32 v5, 16, v5',
            f'v_mul_u32_u24 v6, 30, v5',
            f'v_sub_u32 v6, v4, v6',
            f'v_mul_u32_u24 v7, 6554, v6',
            f'v_lshrrev_b32 v7, 16, v7',
            f'v_mul_u32_u24 v8, 10, v7',
            f'v_sub_u32 v6, v6, v8',
            f'v_mul_u32_u24 v7, 1280, v7',
            f'v_lshl_add_u32 v6, v6, 4, v7',
            f'v_bfe_u32 v7, v5, 2, 2',
            f'v_lshlrev_b32 v7, 3, v7',
            f'v_lshrrev_b32 v8, 4, v5',
            f'v_lshl_add_u32 v7, v8, 2, v7',
            f'v_and_b32 v8, 3, v5',
            f'v_add_u32 v7, v7, v8',
            f'v_mul_u32_u24 v7, 3840, v7',
            f'v_add_u32 v{dst}, v6, v7')
    assert all((q*2185) >> 16 == q//30 for q in range(960))
    witems = [Item(WQS, f'v{10+j}', 's33', 0, 9216 + j*1024, NT_WQ) for j in range(15)]
    split = [xitems[0:6], xitems[6:9] + witems[0:3], witems[3:9], witems[9:15]]
    for L in range(4):
        if L < 3:
            p.I(f's_cmp_lg_u32 s24, {4+L}', f's_cbranch_scc1 K2_QL{L}_NEXT')
        for it in split[L]:
            if it.srd == WQS: wvoff(int(it.voff[1:]) - 10, int(it.voff[1:]))
        gen_loader(p, f'K2_QL{L}', [(Q_N, split[L], [('s31', 1024), ('s32', 1024), ('s33', 32*3840)])], Q_NS, Q_STAGE, 's34', 's35', 's36', stl if L == 0 else None, tail=w2_prefetch, end=(p1_loader_end if FUSE else None))
        if L < 3: p.label(f'K2_QL{L}_NEXT')
    p.label('K2_QC')
    st.stamp()
    ACC = 8
    WS_ = [152, 168]
    XS = [[184, 188, 192], [196, 200, 204]]
    VX, VWQ, VWR = 2, 3, 4
    AX, AWQ, AWR = 208, 209, 210
    acc = lambda i, b: ACC + 16*i + 4*b
    p.I(f'v_lshlrev_b32 v{VX}, 4, v1',
        'v_lshrrev_b32 v5, 2, v1',
        'v_mul_u32_u24 v5, 480, v5',
        'v_and_b32 v6, 3, v1',
        's_mul_i32 s30, s24, 40',
        's_add_u32 s30, s30, 9216',
        'v_add_u32 v5, s30, v5',
        f'v_lshl_add_u32 v{VWQ}, v6, 3, v5',
        'v_min_u32 v6, 2, v6',
        'v_mul_u32_u24 v6, 160, v6',
        f'v_add3_u32 v{VWR}, v5, v6, 32')
    for r in range(ACC, ACC+144): p.I(f'v_mov_b32 v{r}, 0')
    for r in range(WS_[1], WS_[1]+16): p.I(f'v_mov_b32 v{r}, 0')
    for b in XS[1]:
        for r in range(b, b+4): p.I(f'v_mov_b32 v{r}, 0')
    p.I('s_mov_b32 s34, 0', f's_mov_b32 s35, {Q_N//2}')
    w2_touch_setup(p, 252)
    if PF_W2_P1: p.I('s_mov_b32 s63, 0')
    def mf(i, b, wset, xreg):
        c = acc(i, b); w = wset + 4*b
        if b == 3:
            return f'v_mfma_f32_16x16x32_bf16 v[{c}:{c+3}], v[{xreg}:{xreg+3}], v[{w}:{w+3}], v[{c}:{c+3}]'
        return f'v_mfma_f32_16x16x32_bf16 v[{c}:{c+3}], v[{w}:{w+3}], v[{xreg}:{xreg+3}], v[{c}:{c+3}]'
    def wreads(ws):
        out = []
        for b, (va, off) in enumerate(((AWQ, 0), (AWQ, 160), (AWR, 0), (AWQ, 320))):
            r = ws + 4*b
            out.append((f'ds_read_b64_tr_b16 v[{r}:{r+1}], v{va} offset:{off}', ('W', b)))
            out.append((f'ds_read_b64_tr_b16 v[{r+2}:{r+3}], v{va} offset:{off+7680}', ('W', b)))
        return out
    def xread(i, reg):
        return (f'ds_read_b128 v[{reg}:{reg+3}], v{AX} offset:{i*1024}', ('X', i))
    def stage(par):
        ds = DS(p)
        Nn, O = XS[par], XS[1-par]
        Wn, Wo = WS_[par], WS_[1-par]
        p.I('s_barrier',
            f'v_add_u32 v{AX}, s34, v{VX}', f'v_add_u32 v{AWQ}, s34, v{VWQ}', f'v_add_u32 v{AWR}, s34, v{VWR}')
        wr = wreads(Wn)
        head_reads = [wr[0], wr[1], xread(0, Nn[0]), wr[2], wr[3], wr[4], wr[5], xread(1, Nn[1]), wr[6], wr[7], xread(2, Nn[2])]
        k = 0
        for hi, i in enumerate((6, 7, 8)):
            for b in range(4):
                p.I(mf(i, b, Wo, O[hi]))
                if k < len(head_reads): ds.issue(*head_reads[k]); k += 1
        ds.issue(*xread(3, O[0]))
        p.I(f's_add_u32 s34, s34, {Q_STAGE}', f's_cmp_eq_u32 s34, {Q_NS*Q_STAGE}', 's_cselect_b32 s34, 0, s34')
        src = [Nn[0], Nn[1], Nn[2], O[0], O[1], O[2]]
        later = {0: [xread(4, O[1]), xread(5, O[2])], 1: [xread(6, Nn[0])], 2: [xread(7, Nn[1])], 3: [xread(8, Nn[2])]}
        for i in range(6):
            lat = list(later.get(i, []))
            for b in range(4):
                ds.need(('W', b), ('X', i))
                p.I(mf(i, b, Wn, src[i]))
                if lat and b >= 0:
                    ds.issue(*lat.pop(0))
        ds.drain()
    st.stamp()
    p.skip = {0: None, 1: ('v_mfma', 'ds_read'), 2: ('v_mfma',), 3: ('ds_read',)}[NOCOMP]
    p.label('K2_QCL')
    w2_touch(p, 'K2_QNOW2', 252, 's63')
    stage(0)
    stage(1)
    p.I('s_sub_u32 s35, s35, 1', 's_cmp_lg_u32 s35, 0', 's_cbranch_scc1 K2_QCL')
    if FUSE: p.I('s_barrier')
    for hi, i in enumerate((6, 7, 8)):
        for b in range(4):
            p.I(mf(i, b, WS_[1], XS[1][hi]))
    p.skip = None
    st.stamp()
    pr = lambda r: f'v[{r}:{r+1}]'
    VP, VRP = 152, 170
    E2, ONES = 188, 192
    MSKP, MSKC = 196, 200
    MSKP1 = 204
    CS = 208
    p.I('v_and_b32 v5, 15, v1',
        'v_lshrrev_b32 v6, 4, v1',
        f'v_mov_b32 v7, {hexf(-1e30)}',
        f'v_mov_b32 v{CS}, {hexf((DH**-0.5)*1.4426950408889634)}')
    for r in range(4):
        p.I(f'v_lshl_add_u32 v210, v6, 2, {r}',
            'v_sub_u32 v211, v5, v210',
            'v_and_b32 v212, 1, v211',
            'v_cmp_eq_u32 s[40:41], 0, v212',
            'v_cmp_le_i32 s[42:43], 0, v211',
            'v_cmp_ge_i32 s[44:45], -2, v211',
            's_and_b64 s[42:43], s[42:43], s[40:41]',
            's_and_b64 s[44:45], s[44:45], s[40:41]',
            f'v_cndmask_b32 v{MSKC+r}, v7, 0, s[42:43]',
            f'v_cndmask_b32 v{MSKP+r}, v7, 0, s[44:45]')
    p.I('s_cmp_eq_u32 s25, 0', 's_cselect_b64 s[40:41], -1, 0')
    for r in range(4):
        p.I(f'v_cndmask_b32 v{MSKP1+r}, v{MSKP+r}, v7, s[40:41]')
    for r in range(4): p.I(f'v_mov_b32 v{ONES+r}, 0x3f803f80')
    p.I(f'v_mov_b32 v{E2}, 0', f'v_mov_b32 v{E2+1}, 0',
        'v_mov_b32 v210, 0x3f80', 'v_mov_b32 v211, 0x3f800000',
        f'v_mov_b32 v{E2+2}, 0', f'v_mov_b32 v{E2+3}, 0',
        'v_cmp_eq_u32 vcc, 32, v1', f'v_cndmask_b32 v{E2+2}, v{E2+2}, v210, vcc',
        'v_cmp_eq_u32 vcc, 33, v1', f'v_cndmask_b32 v{E2+2}, v{E2+2}, v211, vcc',
        'v_cmp_eq_u32 vcc, 34, v1', f'v_cndmask_b32 v{E2+3}, v{E2+3}, v210, vcc',
        'v_cmp_eq_u32 vcc, 35, v1', f'v_cndmask_b32 v{E2+3}, v{E2+3}, v211, vcc')
    p.I('s_mov_b32 s46, 0', 's_mov_b32 s47, 0xffff0000')
    p.I('s_lshl_b32 s30, s26, 2', 's_add_u32 s30, s30, s24',
        's_lshr_b32 s31, s30, 3',
        's_and_b32 s30, s30, 7',
        's_mul_i32 s31, s31, 5',
        's_mul_i32 s32, s25, 160',
        's_add_u32 s31, s31, s32',
        's_lshr_b32 s32, s30, 1', 's_add_u32 s32, s32, s31', 's_lshl_b32 s32, s32, 10',
        's_and_b32 s33, s30, 1', 's_lshl_b32 s33, s33, 9', 's_add_u32 s32, s32, s33',
        f's_add_u32 s32, s32, {WS_OF}',
        's_add_u32 s31, s31, 4', 's_lshl_b32 s31, s31, 10',
        's_and_b32 s33, s30, 3', 's_lshl_b32 s33, s33, 7', 's_add_u32 s31, s31, s33',
        's_lshr_b32 s33, s30, 2', 's_lshl_b32 s33, s33, 9', 's_add_u32 s31, s31, s33',
        f's_add_u32 s31, s31, {WS_OF}',
        'v_lshlrev_b32 v2, 3, v1',
        'v_mov_b32 v3, 0x10000000',
        'v_cmp_gt_u32 vcc, 16, v1',
        'v_cndmask_b32 v3, v3, v2, vcc')
    def stepA(i):
        Q, K, R, V = (acc(i, b) for b in range(4))
        o = []
        o += [f'v_cvt_pk_bf16_f32 v{Q}, v{Q}, v{Q+1}', f'v_cvt_pk_bf16_f32 v{Q+1}, v{Q+2}, v{Q+3}',
              f'v_cvt_pk_bf16_f32 v{Q+2}, v{R}, v{R+1}', f'v_cvt_pk_bf16_f32 v{Q+3}, v{R+2}, v{R+3}',
              f'v_cvt_pk_bf16_f32 v{K}, v{K}, v{K+1}', f'v_cvt_pk_bf16_f32 v{K+1}, v{K+2}, v{K+3}',
              f'v_cndmask_b32 v{Q+2}, v{Q+2}, 0, s[46:47]', f'v_cndmask_b32 v{Q+3}, v{Q+3}, 0, s[46:47]',
              f'v_mov_b32 v{K+2}, 0', f'v_mov_b32 v{K+3}, 0',
              f'v_cvt_pk_bf16_f32 v{VP+2*i}, v{V}, v{V+1}', f'v_cvt_pk_bf16_f32 v{VP+2*i+1}, v{V+2}, v{V+3}',
              f'v_permlane16_swap_b32 v{Q+2}, v{K+2}', f'v_permlane16_swap_b32 v{Q+3}, v{K+3}',
              f'v_mfma_f32_16x16x32_bf16 v[{R}:{R+3}], v[{Q}:{Q+3}], v[{E2}:{E2+3}], 0']
        return o
    def stepA2(i):
        R = acc(i, 2)
        return [f'v_cvt_pk_bf16_f32 v{VRP+2*i}, v{R}, v{R+1}', f'v_cvt_pk_bf16_f32 v{VRP+2*i+1}, v{R+2}, v{R+3}']
    for grp in ((0, 1, 2), (3, 4, 5), (6, 7, 8)):
        for t in interleave(*[stepA(i) for i in grp]): p.I(t)
    for i in range(9):
        for t in stepA2(i): p.I(t)
    def stepB(i, tset):
        Q = acc(i, 0); Kp = acc(i-1, 1); Kc = acc(i, 1)
        Sp = acc(i, 3); Sc = acc(i, 2)
        M, M2, PF, O0, O1, Lr = tset
        mp = MSKP1 if i == 1 else MSKP
        o = [f'v_mfma_f32_16x16x32_bf16 v[{Sp}:{Sp+3}], v[{Kp}:{Kp+3}], v[{Q}:{Q+3}], 0',
             f'v_mfma_f32_16x16x32_bf16 v[{Sc}:{Sc+3}], v[{Kc}:{Kc+3}], v[{Q}:{Q+3}], 0']
        for hp in range(2):
            o.append(f'v_pk_fma_f32 {pr(Sp+2*hp)}, {pr(Sp+2*hp)}, {pr(CS)}, {pr(mp+2*hp)} op_sel_hi:[1,0,1]')
        for hp in range(2):
            o.append(f'v_pk_fma_f32 {pr(Sc+2*hp)}, {pr(Sc+2*hp)}, {pr(CS)}, {pr(MSKC+2*hp)} op_sel_hi:[1,0,1]')
        o += [f'v_max3_f32 v{M}, v{Sp}, v{Sp+1}, v{Sp+2}',
              f'v_max3_f32 v{M2}, v{Sp+3}, v{Sc}, v{Sc+1}',
              f'v_max3_f32 v{M}, v{M}, v{Sc+2}, v{Sc+3}',
              f'v_max_f32 v{M}, v{M}, v{M2}',
              f'v_mov_b32 v{M2}, v{M}',
              f'v_permlane32_swap_b32 v{M}, v{M2}',
              f'v_max_f32 v{M}, v{M}, v{M2}',
              f'v_mov_b32 v{M2}, v{M}',
              f'v_permlane16_swap_b32 v{M}, v{M2}',
              f'v_max_f32 v{M}, v{M}, v{M2}',
              f'v_sub_f32 v{M}, 0, v{M}']
        for base in (Sp, Sc):
            for hp in range(2):
                o.append(f'v_pk_add_f32 {pr(base+2*hp)}, {pr(base+2*hp)}, {pr(M)} op_sel_hi:[1,0]')
        for base in (Sp, Sc):
            for r in range(4):
                o.append(f'v_exp_f32 v{base+r}, v{base+r}')
        o += [f'v_cvt_pk_bf16_f32 v{PF}, v{Sp}, v{Sp+1}', f'v_cvt_pk_bf16_f32 v{PF+1}, v{Sp+2}, v{Sp+3}',
              f'v_cvt_pk_bf16_f32 v{PF+2}, v{Sc}, v{Sc+1}', f'v_cvt_pk_bf16_f32 v{PF+3}, v{Sc+2}, v{Sc+3}']
        vp = VP + 2*(i-1); vr = VRP + 2*(i-1)
        o += [f'v_mfma_f32_16x16x32_bf16 v[{Lr}:{Lr+3}], v[{ONES}:{ONES+3}], v[{PF}:{PF+3}], 0',
              f'v_mfma_f32_16x16x32_bf16 v[{O0}:{O0+3}], v[{vp}:{vp+3}], v[{PF}:{PF+3}], 0',
              f'v_mfma_f32_16x16x32_bf16 v[{O1}:{O1+3}], v[{vr}:{vr+3}], v[{PF}:{PF+3}], 0',
              f'v_rcp_f32 v{Lr}, v{Lr}']
        for base in (O0, O1):
            for hp in range(2):
                o.append(f'v_pk_mul_f32 {pr(base+2*hp)}, {pr(base+2*hp)}, {pr(Lr)} op_sel_hi:[1,0]')
        o += [f'v_cvt_pk_bf16_f32 v{O0}, v{O0}, v{O0+1}', f'v_cvt_pk_bf16_f32 v{O0+1}, v{O0+2}, v{O0+3}',
              f'v_cvt_pk_bf16_f32 v{O1}, v{O1}, v{O1+1}', f'v_cvt_pk_bf16_f32 v{O1+1}, v{O1+2}, v{O1+3}']
        so = (i-1)*20480
        o += [f's_add_u32 s{48+2*(i%2)}, s32, {so}', f's_add_u32 s{49+2*(i%2)}, s31, {so}',
              f'buffer_store_dwordx2 v[{O0}:{O0+1}], v2, s[16:19], s{48+2*(i%2)} offen {HAND}',
              f'buffer_store_dwordx2 v[{O1}:{O1+1}], v3, s[16:19], s{49+2*(i%2)} offen {HAND}']
        return o
    ts = [(212, 213, 216, 220, 224, 228), (214, 215, 232, 236, 240, 244)]
    for i in range(1, 9, 2):
        for t in interleave(stepB(i, ts[0]), stepB(i+1, ts[1])): p.I(t)
    if FUSE:
        p.I('s_lshl_b32 s30, s25, 7', 's_lshl_b32 s31, s26, 2', 's_add_u32 s30, s30, s31', f's_add_u32 s30, s30, {WS_FQ}')
        signal(p, 'K2_QSIG', 4, 's30', 2, 's31')
    if STAMP:
        p.I('s_waitcnt vmcnt(0)'); st.stamp(); p.I('s_cmp_lg_u32 s24, 0', 's_cbranch_scc1 K2_QNOST'); st.flush(0, wait=not FUSE); p.label('K2_QNOST')
    p.I('s_branch P3_ENTRY' if FUSE else 's_endpgm')

def gen_k2(name='mid_kernel'):
    p = Prog()
    p.raw(kernel_header(name))
    p.I(f's_cmp_ge_u32 s2, {K2_GRID}',
        's_cbranch_scc1 K2_DONE',
        f's_load_dwordx4 s[4:7], s[0:1], {KA_W1}',
        f's_load_dwordx2 s[8:9], s[0:1], {KA_WQKV}',
        f's_load_dwordx2 s[10:11], s[0:1], {KA_W2}',
        f's_load_dwordx2 s[12:13], s[0:1], {KA_WS}',
        'v_lshrrev_b32 v1, 6, v0',
        'v_readfirstlane_b32 s24, v1',
        'v_and_b32 v1, 63, v0',
        's_and_b32 s27, s2, 7',
        's_lshr_b32 s28, s2, 3')
    if FUSE:
        k3.load_p3_ptrs(p)
        p.I(f'v_mov_b32 v2, {LDS_CNT}', 'v_mov_b32 v3, 0', 'ds_write_b32 v2, v3')
    p.I('s_waitcnt lgkmcnt(0)')
    srd(p, 16, 12, WS_END)
    p.I('s_cmp_ge_u32 s27, 4', 's_cbranch_scc1 K2_ISU')
    p.I('s_lshr_b32 s25, s27, 1', 's_lshl_b32 s25, s25, 3', 's_and_b32 s29, s28, 7', 's_add_u32 s25, s25, s29',
        's_and_b32 s26, s27, 1', 's_lshl_b32 s26, s26, 2', 's_lshr_b32 s29, s28, 3', 's_add_u32 s26, s26, s29',
        's_branch K2_Q')
    p.label('K2_ISU')
    p.I('s_sub_u32 s29, s27, 4', 's_and_b32 s25, s28, 7', 's_lshr_b32 s30, s28, 3',
        's_lshl_b32 s26, s29, 2', 's_cmp_eq_u32 s29, 3', 's_cselect_b32 s26, 11, s26', 's_add_u32 s26, s26, s30',
        's_cmp_ge_u32 s29, 2', 's_cselect_b32 s31, 3, 4', 's_cmp_ge_u32 s30, s31', 's_cbranch_scc1 ' + ('P3_ENTRY' if FUSE else 'K2_DONE'))
    gen_u(p)
    gen_q(p)
    if FUSE: k3.gen_p3(p)
    p.label('K2_DONE')
    p.I('s_endpgm')
    return p.finalize(), kernel_desc(name, 256, 72)

if __name__ == '__main__':
    t, d = gen_k2()
    print(t); print(d)
```

```python
from common import *
from ring import *

K3_GRID = 256
K3_BLOCK = 512
K3_NS = 8
K3_STAGE = 18432
K3_LDS = K3_NS * K3_STAGE
NO, NY = 10, 27

PX, PW2, PB2, POUT, PWS = 52, 54, 56, 58, 60

def load_p3_ptrs(p):
    p.I(f's_load_dwordx2 s[{PX}:{PX+1}], s[0:1], {KA_X}',
        f's_load_dwordx2 s[{PW2}:{PW2+1}], s[0:1], {KA_W2}',
        f's_load_dwordx4 s[{PB2}:{PB2+3}], s[0:1], {KA_B2}',
        f's_load_dwordx2 s[{PWS}:{PWS+1}], s[0:1], {KA_WS}')

def gen_k3(name='final_kernel'):
    p = Prog()
    p.raw(kernel_header(name))
    p.I(f's_cmp_ge_u32 s2, {K3_GRID}', 's_cbranch_scc1 K3_DONE')
    load_p3_ptrs(p)
    p.I('v_lshrrev_b32 v1, 6, v0',
        'v_readfirstlane_b32 s24, v1',
        'v_and_b32 v1, 63, v0',
        's_waitcnt lgkmcnt(0)')
    srd(p, 16, PWS, WS_END)
    gen_p3(p)
    return p.finalize(), kernel_desc(name, 96, 64)

def gen_p3(p):
    st = Stamper(p, 2); stl = Stamper(p, 2)
    p.label('P3_ENTRY')
    p.I('s_and_b32 s25, s2, 7',
        's_lshr_b32 s26, s2, 3',
        's_lshr_b32 s27, s25, 1',
        's_lshl_b32 s27, s27, 3',
        's_and_b32 s28, s26, 7',
        's_add_u32 s27, s27, s28',
        's_and_b32 s28, s25, 1',
        's_lshl_b32 s28, s28, 2',
        's_lshr_b32 s29, s26, 3',
        's_add_u32 s28, s28, s29')
    p.I('s_cmp_lt_u32 s24, 4', 's_cbranch_scc1 K3_CONS')
    srd(p, 20, PW2, SZ_W2)
    p.I('v_lshlrev_b32 v2, 4, v1')
    p.I('v_lshrrev_b32 v3, 3, v1',
        'v_bfe_u32 v4, v1, 4, 2',
        'v_lshlrev_b32 v4, 1, v4',
        'v_and_b32 v5, 7, v1',
        'v_xor_b32 v4, v4, v5',
        'v_lshlrev_b32 v4, 4, v4',
        'v_lshl_add_u32 v3, v3, 12, v4')
    WSS, W2S = 's[16:19]', 's[20:23]'
    p.I('s_mul_i32 s30, s28, 102400',
        f's_add_u32 s30, s30, {WS_WOF}',
        's_mul_i32 s31, s28, 276480',
        f's_add_u32 s31, s31, {WS_UF}',
        's_mul_i32 s32, s27, 81920',
        f's_add_u32 s32, s32, {WS_OF}',
        's_lshl_b32 s33, s27, 7')
    for L in range(4):
        lab = f'K3_LD{L}'
        if L < 3:
            p.I(f's_cmp_lg_u32 s24, {4+L}', f's_cbranch_scc1 K3_LD{L}_NEXT')
        if L < 2:
            itO = [Item(WSS, 'v2', 's30', L*5120 + m*1024, L*5120 + m*1024, NT_WO) for m in range(5)]
            itY = [Item(WSS, 'v2', 's31', L*5120 + m*1024, L*5120 + m*1024, NT_U + ' ' + HAND) for m in range(5)]
            phases = [(NO, itO, [('s30', 10240)]), (NY, itY, [('s31', 10240)])]
        else:
            e = L - 2
            itO = [Item(WSS, 'v2', 's32', w*20480 + e*1024, 10240 + e*4096 + w*1024, NT_O + ' ' + HAND) for w in range(4)]
            itY = [Item(W2S, 'v3', 's33', (32*e + 8*m)*4096, 10240 + e*4096 + m*1024, NT_W2) for m in range(4)]
            phases = [(NO, itO, [('s32', 2048)]), (NY, itY, [('s33', 64*4096)])]
        if FUSE and L >= 2:
            p.I('s_lshr_b32 s37, s27, 1', 's_lshl_b32 s37, s37, 7', f's_add_u32 s37, s37, {WS_FQ}',
                'v_and_b32 v6, 7, v1', 'v_lshlrev_b32 v6, 2, v6', 'v_add_u32 v6, s37, v6')
            poll_flags(p, f'P3_POLLO{L}', WSS, 'v6', 'v7', 's37')
        gen_loader(p, lab, phases, K3_NS, K3_STAGE, 's34', 's35', 's36', stl if L == 0 else None, wsptr=PWS)
        if L < 3: p.label(f'K3_LD{L}_NEXT')
    p.label('K3_CONS')
    st.stamp()
    ACC = 8; SET = [28, 52]
    XR = 76; B2 = 86
    VA, VB, VBY = 2, 3, 4
    srd(p, 20, PX, SZ_X)
    srd(p, 36, PB2, S*2)
    srd(p, 40, POUT, SZ_X)
    p.I('v_and_b32 v5, 15, v1',
        's_lshl_b32 s30, s27, 6',
        's_lshl_b32 s31, s24, 4',
        's_add_u32 s30, s30, s31',
        'v_add_u32 v5, s30, v5',
        'v_mul_u32_u24 v6, 1280, v5',
        'v_lshrrev_b32 v7, 4, v1',
        'v_lshl_add_u32 v6, v7, 3, v6',
        's_mul_i32 s31, s28, 160',
        'v_add_u32 v6, s31, v6',
        'v_lshlrev_b32 v5, 1, v5')
    for mb in range(5):
        p.I(f'buffer_load_dwordx2 v[{XR+2*mb}:{XR+2*mb+1}], v6, s[20:23], 0 offen offset:{32*mb}')
    p.I(f'buffer_load_ushort v{B2}, v5, s[36:39], 0 offen')
    p.I(f'v_lshlrev_b32 v{VA}, 4, v1',
        's_lshl_b32 s31, s24, 10',
        f'v_lshlrev_b32 v{VB}, 3, v1',
        f'v_add_u32 v{VB}, s31, v{VB}',
        f'v_add_u32 v{VB}, 10240, v{VB}',
        'v_lshrrev_b32 v7, 2, v1',
        'v_bfe_u32 v5, v1, 3, 2',
        'v_xor_b32 v5, s24, v5',
        'v_lshlrev_b32 v5, 5, v5',
        'v_lshl_add_u32 v5, v7, 7, v5',
        'v_and_b32 v7, 3, v1',
        'v_lshl_add_u32 v5, v7, 3, v5',
        f'v_add_u32 v{VBY}, 10240, v5')
    for r in range(ACC, ACC+20): p.I(f'v_mov_b32 v{r}, 0')
    for r in range(SET[1], SET[1]+24): p.I(f'v_mov_b32 v{r}, 0')
    p.I('s_mov_b32 s34, 0')
    if ROLL_Y:
        srd(p, 44, PW2, SZ_W2)
        p.I('v_lshrrev_b32 v5, 4, v1', 'v_lshlrev_b32 v5, 6, v5', 'v_and_b32 v7, 15, v1', 'v_add_u32 v5, v5, v7',
            's_and_b32 s30, s28, 3', 's_lshl_b32 s30, s30, 4', 'v_add_u32 v5, s30, v5', 'v_lshlrev_b32 v89, 12, v5',
            's_lshl_b32 s48, s27, 7', 's_cmp_eq_u32 s24, 0', 's_cselect_b32 s49, 0, 4', 's_mov_b32 s50, 0')
    VA2, VB2 = 87, 88
    def mfmas(s):
        for mb in range(5):
            a = SET[s] + 4*mb; b = SET[s] + 20
            yield f'v_mfma_f32_16x16x32_bf16 v[{ACC+4*mb}:{ACC+4*mb+3}], v[{a}:{a+3}], v[{b}:{b+3}], v[{ACC+4*mb}:{ACC+4*mb+3}]'
    def reads(ds, s, e, phase):
        out = []
        b = SET[s] + 20
        if phase == 'O':
            out.append((f'ds_read_b64 v[{b}:{b+1}], v{VB2} offset:{e*4096}', (s, 'B')))
            out.append((f'ds_read_b64 v[{b+2}:{b+3}], v{VB2} offset:{e*4096+512}', (s, 'B')))
        else:
            out.append((f'ds_read_b64_tr_b16 v[{b}:{b+1}], v{VB2} offset:{e*4096}', (s, 'B')))
            out.append((f'ds_read_b64_tr_b16 v[{b+2}:{b+3}], v{VB2} offset:{e*4096+2048}', (s, 'B')))
        for mb in range(5):
            a = SET[s] + 4*mb
            out.append((f'ds_read_b128 v[{a}:{a+3}], v{VA2} offset:{e*5120+mb*1024}', (s, mb)))
        return out
    def stage(phase, cnt, lab):
        p.I(f's_mov_b32 s35, {cnt}')
        p.label(lab)
        ds = DS(p)
        if FUSE and phase == 'O':
            p.I(f's_cmp_lg_u32 s35, {NO - (NO - (K3_NS - 1))}', f's_cbranch_scc1 {lab}_NOPOLL', 's_cmp_lg_u32 s24, 1', f's_cbranch_scc1 {lab}_NOPOLL',
                's_lshl_b32 s51, s28, 7', f's_add_u32 s51, s51, {WS_FU}',
                'v_and_b32 v5, 15, v1', 'v_min_u32 v5, 13, v5', 'v_lshlrev_b32 v5, 2, v5', 'v_add_u32 v5, s51, v5')
            poll_flags(p, 'P3_POLLU', 's[16:19]', 'v5', 'v7', 's51')
            p.label(f'{lab}_NOPOLL')
        p.I('s_barrier',
            f'v_add_u32 v{VA2}, s34, v{VA}',
            f'v_add_u32 v{VB2}, s34, v{VB if phase == "O" else VBY}')
        if ROLL_Y:
            p.I('s_and_b32 s51, s50, 3', 's_add_u32 s50, s50, 1', 's_or_b32 s51, s51, s49', f's_cbranch_scc1 {lab}_NOPF',
                f'buffer_load_dword v90, v89, s[44:47], s48 offen {PF_AUX}', f's_add_u32 s48, s48, {4*64*4096}')
            p.label(f'{lab}_NOPF')
        r0 = reads(ds, 0, 0, phase); m1 = list(mfmas(1))
        k = 0
        for mi, m in enumerate(m1):
            for _ in range(2 if mi < 2 else 1):
                if k < len(r0): ds.issue(*r0[k]); k += 1
            p.I(m)
        while k < len(r0): ds.issue(*r0[k]); k += 1
        r1 = reads(ds, 1, 1, phase)
        for t in r1: ds.issue(*t)
        p.I(f's_add_u32 s34, s34, {K3_STAGE}', f's_cmp_eq_u32 s34, {K3_LDS}', 's_cselect_b32 s34, 0, s34')
        for mb, m in enumerate(mfmas(0)):
            ds.need((0, 'B'), (0, mb))
            p.I(m)
        ds.drain()
        p.I('s_sub_u32 s35, s35, 1', 's_cmp_lg_u32 s35, 0', f's_cbranch_scc1 {lab}')
    st.stamp()
    p.skip = {0: None, 1: ('v_mfma', 'ds_read'), 2: ('v_mfma',), 3: ('ds_read',)}[NOCOMP]
    stage('O', NO, 'K3_CO')
    st.stamp()
    stage('Y', NY, 'K3_CY')
    st.stamp()
    p.skip = None
    for m in mfmas(1): p.I(m)
    p.I('s_waitcnt vmcnt(0)',
        f'v_lshlrev_b32 v{B2}, 16, v{B2}')
    T = 28
    for mb in range(5):
        a = ACC + 4*mb; x = XR + 2*mb; t = T + 4*mb
        p.I(f'v_lshlrev_b32 v{t}, 16, v{x}', f'v_and_b32 v{t+1}, 0xffff0000, v{x}',
            f'v_lshlrev_b32 v{t+2}, 16, v{x+1}', f'v_and_b32 v{t+3}, 0xffff0000, v{x+1}')
        for r in range(4):
            p.I(f'v_add_f32 v{t+r}, v{t+r}, v{B2}')
    for mb in range(5):
        a = ACC + 4*mb; t = T + 4*mb
        for r in range(4):
            p.I(f'v_add_f32 v{t+r}, v{t+r}, v{a+r}')
        p.I(f'v_cvt_pk_bf16_f32 v{t}, v{t}, v{t+1}', f'v_cvt_pk_bf16_f32 v{t+1}, v{t+2}, v{t+3}',
            f'buffer_store_dwordx2 v[{t}:{t+1}], v6, s[40:43], 0 offen offset:{32*mb}')
    if STAMP:
        p.I('s_waitcnt vmcnt(0)'); st.stamp(); p.I('s_cmp_lg_u32 s24, 0', 's_cbranch_scc1 K3_DONE'); st.flush(0, wsptr=PWS)
    p.label('K3_DONE')
    p.I('s_endpgm')

if __name__ == '__main__':
    t, d = gen_k3()
    print(t); print(d)
```

```python
from common import *

class Item:
    def __init__(self, srd, voff, srun, goff, lds_off, aux=''):
        self.srd, self.voff, self.srun, self.goff, self.lds_off, self.aux = srd, voff, srun, goff, lds_off, aux

def gen_loader(p, pfx, phases, NS, stage_bytes, s_slot, s_tmp, s_cnt, st=None, slot=1, tail=None, end=None, wsptr=12):
    D = len(phases[0][1])
    assert all(len(ph[1]) == D for ph in phases)
    N = sum(ph[0] for ph in phases)
    assert (NS - 1) * D <= 63
    ring = NS * stage_bytes
    def issue(items, adv):
        for it in items:
            p.I(f's_add_u32 m0, {s_slot}, {it.lds_off}')
            if it.goff:
                p.I(f's_add_u32 {s_tmp}, {it.srun}, {it.goff}')
                so = s_tmp
            else:
                so = it.srun
                p.I('s_nop 0')
            p.I(f'buffer_load_dwordx4 {it.voff}, {it.srd}, {so} offen {it.aux} lds')
        for (sr, st) in adv:
            p.I(f's_add_u32 {sr}, {sr}, {st}')
        p.I(f's_add_u32 {s_slot}, {s_slot}, {stage_bytes}',
            f's_cmp_eq_u32 {s_slot}, {ring}',
            f's_cselect_b32 {s_slot}, 0, {s_slot}')
    if st: st.n = 0; st.stamp()
    p.I(f's_mov_b32 {s_slot}, 0')
    j = 0; lab = 0
    for ph in phases:
        n, items, adv = ph[0], ph[1], ph[2]
        if len(ph) > 3:
            for t in ph[3]: p.I(t)
        npro = max(0, min(n, NS - 1 - j))
        nste = n - npro
        for cnt, steady in ((npro, False), (nste, True)):
            if cnt == 0: continue
            L = f'{pfx}_L{lab}'; lab += 1
            if cnt > 1:
                p.I(f's_mov_b32 {s_cnt}, {cnt}')
                p.label(L)
            if steady:
                p.I(f's_waitcnt vmcnt({(NS-2)*D})', 's_barrier')
            issue(items, adv)
            if cnt > 1:
                p.I(f's_sub_u32 {s_cnt}, {s_cnt}, 1', f's_cmp_lg_u32 {s_cnt}, 0', f's_cbranch_scc1 {L}')
        j += n
    if st: st.stamp()
    for i in range(max(0, N - NS + 1), N):
        p.I(f's_waitcnt vmcnt({(N-1-i)*D})', 's_barrier')
    if tail: tail(p)
    if st:
        st.stamp(); st.flush(slot, wsptr=wsptr, wait=(end is None))
    if end: end(p)
    else: p.I('s_endpgm')

class DS:
    def __init__(self, p):
        self.p = p; self.q = []; self.done = 0
    def issue(self, text, tag):
        self.p.I(text); self.q.append(tag)
    def need(self, *tags):
        last = -1
        for t in tags:
            for k, x in enumerate(self.q):
                if x == t: last = max(last, k)
        if last < self.done: return
        n = len(self.q) - 1 - last
        n = min(n, 15)
        self.p.I(f's_waitcnt lgkmcnt({n})')
        self.done = len(self.q) - n
    def drain(self):
        if self.done < len(self.q):
            self.p.I('s_waitcnt lgkmcnt(0)')
        self.q = []; self.done = 0

def poll_flags(p, lab, srd, vaddr, vtmp, scnt, want=1):
    p.I(f's_mov_b32 {scnt}, 0')
    p.label(lab)
    p.I(f'buffer_load_dword {vtmp}, {vaddr}, {srd}, 0 offen sc1',
        's_waitcnt vmcnt(0)',
        f'v_cmp_ne_u32 vcc, {want}, {vtmp}',
        f's_add_u32 {scnt}, {scnt}, 1',
        's_cmp_eq_u64 vcc, 0',
        f's_cbranch_scc1 {lab}_OK',
        f's_cmp_lt_u32 {scnt}, 0x40000',
        f's_cbranch_scc0 {lab}_OK',
        's_sleep 2',
        f's_branch {lab}')
    p.label(f'{lab}_OK')

def signal(p, lab, nwaves, flag_soff, vt, st):
    p.I('s_waitcnt vmcnt(0)',
        's_mov_b64 exec, 1',
        f'v_mov_b32 v{vt}, {LDS_CNT}', f'v_mov_b32 v{vt+1}, 1',
        f'ds_add_rtn_u32 v{vt+1}, v{vt}, v{vt+1}',
        's_waitcnt lgkmcnt(0)',
        f'v_readfirstlane_b32 {st}, v{vt+1}',
        f's_cmp_lg_u32 {st}, {nwaves-1}',
        f's_cbranch_scc1 {lab}',
        f'v_mov_b32 v{vt}, 0', f'v_mov_b32 v{vt+1}, 1',
        f'buffer_store_dword v{vt+1}, v{vt}, s[16:19], {flag_soff} offen sc1')
    p.label(lab)
    p.I('s_mov_b64 exec, -1')
```

```python
import sys, os
sys.path.insert(0, os.path.dirname(os.path.abspath(__file__)))
from common import *
import k1, k2, k3
NAME = 'parallel_sum__sliding_local_dilated__mixer_token_mlp__prompt'
def build():
    ref = open(os.path.join(os.path.dirname(os.path.abspath(__file__)), '..', 'cdna_kernels', NAME + '.s.ref')).read().split('\n')
    head = [l for l in ref if l.startswith(';') and '@launch' not in l and 'Override' not in l and 'grid=ceil' not in l]
    t1, d1 = k1.gen_k1('prep_kernel')
    t2, d2 = k2.gen_k2('mid_kernel')
    if FUSE:
        return '\n'.join(head + [
            f'; @launch kernel=prep_kernel grid=({k1.K1_GRID},1,1) block=({k1.K1_BLOCK},1,1) lds={k1.K1_LDS}',
            f'; @launch kernel=mid_kernel grid=({k2.K2_GRID},1,1) block=({k2.K2_BLOCK},1,1) lds={k2.K2_LDS}',
            '.amdgcn_target "amdgcn-amd-amdhsa--gfx950"', '.text', t1, t2,
            '.section .rodata,"a"', '.p2align 6', d1, '.p2align 6', d2, ''])
    t3, d3 = k3.gen_k3('final_kernel')
    out = head + [
        f'; @launch kernel=prep_kernel grid=({k1.K1_GRID},1,1) block=({k1.K1_BLOCK},1,1) lds={k1.K1_LDS}',
        f'; @launch kernel=mid_kernel grid=({k2.K2_GRID},1,1) block=({k2.K2_BLOCK},1,1) lds={k2.K2_LDS}',
        f'; @launch kernel=final_kernel grid=({k3.K3_GRID},1,1) block=({k3.K3_BLOCK},1,1) lds={k3.K3_LDS}',
        '.amdgcn_target "amdgcn-amd-amdhsa--gfx950"', '.text', t1, t2, t3,
        '.section .rodata,"a"', '.p2align 6', d1, '.p2align 6', d2, '.p2align 6', d3, '']
    return '\n'.join(out)
if __name__ == '__main__':
    dst = sys.argv[1] if len(sys.argv) > 1 else os.path.join(os.path.dirname(os.path.abspath(__file__)), '..', 'cdna_kernels', NAME + '.s')
    open(dst, 'w').write(build())
    print('wrote', dst)
```

```python
from asm import Prog
S, D, F, H, DH = 2048, 640, 1728, 32, 20
KA_X, KA_WQKV, KA_WO, KA_BX, KA_W1, KA_B1, KA_W2, KA_B2, KA_OUT, KA_DBG, KA_WS = [8*i for i in range(11)]
WS_XN  = 0x000000
WS_HT  = 0x280000
WS_WOF = 0x500000
WS_UF  = 0x600000
WS_OF  = 0x880000
WS_FLAG = 0xB00000
WS_FQ = WS_FLAG
WS_FU = WS_FLAG + 16*128
WS_END = 0xB01000
SZ_X = S*D*2
SZ_WQKV = D*3*D*2
SZ_WO = D*D*2
SZ_W1 = S*F*2
SZ_W2 = F*S*2

def srd(p, r, lo, size):
    p.I(f's_mov_b32 s{r}, s{lo}',
        f's_and_b32 s{r+1}, s{lo+1}, 0xffff',
        f's_mov_b32 s{r+2}, {size}',
        f's_mov_b32 s{r+3}, 0x20000')

def kernel_header(name):
    return (f'.globl {name}\n.p2align 8\n.type {name},@function\n{name}:')

def kernel_desc(name, vgpr, sgpr=96):
    import os
    if os.environ.get('STAMP','0')=='1': sgpr=100; vgpr=max(vgpr,256)
    acc = (vgpr + 3)//4*4
    return f'''.amdhsa_kernel {name}
  .amdhsa_next_free_vgpr {vgpr}
  .amdhsa_next_free_sgpr {sgpr}
  .amdhsa_accum_offset {acc}
  .amdhsa_group_segment_fixed_size 0
  .amdhsa_kernarg_size 88
  .amdhsa_user_sgpr_count 2
  .amdhsa_user_sgpr_kernarg_segment_ptr 1
  .amdhsa_system_sgpr_workgroup_id_x 1
  .amdhsa_float_denorm_mode_32 3
.end_amdhsa_kernel'''

import os
STAMP = os.environ.get('STAMP', '0') == '1'
WS_STAMP = 0x1000000
DBGSTAMP = os.environ.get('DBGSTAMP', '0') == '1'
class Stamper:
    def __init__(self, p, kidx, base=70):
        self.p, self.kidx, self.base, self.n = p, kidx, base, 0
    def stamp(self):
        if not STAMP: return
        b = self.base + 2*self.n
        self.p.I(f's_memrealtime s[{b}:{b+1}]')
        c = 80 + 2*self.n
        self.p.I(f's_memtime s[{c}:{c+1}]')
        self.n += 1
        assert self.n <= 5
    def flush(self, slot, vtmp=(250, 251), wsptr=12, wait=True):
        if not STAMP: return
        p = self.p
        p.I('s_waitcnt lgkmcnt(0)')
        if DBGSTAMP:
            if slot == 0:
                lab = f'DBG{len(p.ins)}'
                if self.kidx == 0:
                    p.I(f's_add_u32 s92, s{wsptr}, {WS_STAMP}', f's_addc_u32 s93, s{wsptr+1}, 0', 's_and_b32 s93, s93, 0xffff', 's_mov_b32 s94, 256', 's_mov_b32 s95, 0x20000', f'v_mov_b32 v{vtmp[1]}, 0')
                    p.I('s_cmp_lg_u32 s2, 0', f's_cbranch_scc1 {lab}_E')
                    for i in range(self.n):
                        p.I(f'v_mov_b32 v{vtmp[0]}, s{self.base+2*i}', f'buffer_store_dword v{vtmp[0]}, v{vtmp[1]}, s[92:95], 0 offen offset:{4*i}')
                    p.label(f'{lab}_E')
                else:
                    last = (self.kidx == 2)
                    p.I(f's_add_u32 s92, s{wsptr}, {WS_STAMP}', f's_addc_u32 s93, s{wsptr+1}, 0', 's_and_b32 s93, s93, 0xffff', 's_mov_b32 s94, 256', 's_mov_b32 s95, 0x20000', f'v_mov_b32 v{vtmp[1]}, 0')
                    base = {1: 5, 2: 9}[self.kidx]
                    p.I('s_cmp_lg_u32 s2, 0', f's_cbranch_scc1 {lab}_4')
                    for i in range(min(self.n, 5)):
                        if base + i < 14:
                            p.I(f'v_mov_b32 v{vtmp[0]}, s{self.base+2*i}', f'buffer_store_dword v{vtmp[0]}, v{vtmp[1]}, s[92:95], 0 offen offset:{4*(base+i)} sc1')
                    p.label(f'{lab}_4')
                    p.I('s_cmp_lg_u32 s2, 4', f's_cbranch_scc1 {lab}_E')
                    i = self.n - 1
                    p.I(f'v_mov_b32 v{vtmp[0]}, s{self.base+2*i}', f'buffer_store_dword v{vtmp[0]}, v{vtmp[1]}, s[92:95], 0 offen offset:{4*(13+self.kidx)} sc1')
                    p.label(f'{lab}_E')
                    if last:
                        p.I('s_cmp_lg_u32 s2, 0', f's_cbranch_scc1 {lab}_F', 's_waitcnt vmcnt(0)', 's_sleep 127', 's_sleep 127',
                            f'v_lshlrev_b32 v{vtmp[1]}, 2, v1', f'buffer_load_dword v{vtmp[0]}, v{vtmp[1]}, s[92:95], 0 offen sc1',
                            f's_load_dwordx2 s[92:93], s[0:1], {KA_DBG}', 's_waitcnt lgkmcnt(0)', 's_and_b32 s93, s93, 0xffff', 's_mov_b32 s94, 64',
                            's_waitcnt vmcnt(0)', f'buffer_store_dword v{vtmp[0]}, v{vtmp[1]}, s[92:95], 0 offen')
                        p.label(f'{lab}_F')
            if wait: p.I('s_waitcnt vmcnt(0)')
            return
        p.I(f's_add_u32 s92, s{wsptr}, {WS_STAMP + self.kidx*0x20000}', f's_addc_u32 s93, s{wsptr+1}, 0', 's_and_b32 s93, s93, 0xffff',
            's_mov_b32 s94, 0x20000', 's_mov_b32 s95, 0x20000')
        p.I('s_lshl_b32 s96, s2, 8', f's_add_u32 s96, s96, {slot*64}')
        for i in range(self.n):
            b = self.base + 2*i
            p.I(f'v_mov_b32 v{vtmp[0]}, s{b}', f'v_mov_b32 v{vtmp[1]}, 0',
                f'buffer_store_dword v{vtmp[0]}, v{vtmp[1]}, s[92:95], s96 offen offset:{4*i}',
                f'v_mov_b32 v{vtmp[0]}, s{80+2*i}',
                f'buffer_store_dword v{vtmp[0]}, v{vtmp[1]}, s[92:95], s96 offen offset:{32+4*i}')
        if wait: p.I('s_waitcnt vmcnt(0)')

def opt(name, default):
    v = os.environ.get(name)
    if v is None: return default
    return type(default)(v)
PF_W1_ROWS = opt('PF_W1_ROWS', 2048)
PF_WQ = opt('PF_WQ', 1)
PF_W2_ROWS = opt('PF_W2_ROWS', 1728)
PF_AUX = opt('PF_AUX', '')
NT_H = opt('NT_H', '')
NT_W1 = opt('NT_W1', '')
NT_XN = opt('NT_XN', '')
NT_WQ = opt('NT_WQ', '')
NT_U = opt('NT_U', '')
NT_O = opt('NT_O', '')
NT_W2 = opt('NT_W2', '')
NT_WO = opt('NT_WO', '')
NOCOMP = opt('NOCOMP', 0)
ROLL_U = opt('ROLL_U', 0)
ROLL_Y = opt('ROLL_Y', 0)
PF_CODE = opt('PF_CODE', 1)
FUSE = opt('FUSE', 1)
HAND = 'sc1' if FUSE else ''
LDS_CNT = 163840 - 64
PF_W2_P1 = opt('PF_W2_P1', 0)
```

```python
import os, struct
from asm import Prog

NAME = 'parallel_sum__sliding_local_dilated__mixer_token_mlp__prompt'
KERNEL = NAME + '_kernel'
S, D, F, H, DH = 2048, 640, 1728, 32, 20
KA_X, KA_WQKV, KA_WO, KA_BX, KA_W1, KA_B1, KA_W2, KA_B2, KA_OUT, KA_DBG, KA_WS = [8*i for i in range(11)]
SZ_X = S*D*2; SZ_WQKV = D*3*D*2; SZ_WO = D*D*2; SZ_W1 = S*F*2; SZ_W2 = F*S*2

FS = 16
WS_FL  = 0x20000-0x20000
WS_FO  = 0x8000
WS_FQ  = 0x9000
WS_FU  = 0xA000
WS_EPOCH = 0xC000
WS_XN  = 0x010000
WS_HT  = 0x290000
WS_WOF = 0x510000
WS_UF  = 0x5E0000
WS_OF  = 0x800000
WS_END = 0xA80000
WS_STAMP = 0x1000000

PX, PWQ, PWO, PW1, PB1, PW2, PB2, POUT, PDBG, PWS = 72, 74, 76, 80, 82, 84, 86, 88, 90, 92
SE, TAG = 95, 94
WSS = 's[16:19]'
LDS_BYTES = 163840
LDS_CNT = LDS_BYTES - 64

def opt(name, default):
    v = os.environ.get(name)
    return default if v is None else type(default)(v)
STAMP = opt('STAMP', 0)
NOCOMP = opt('NOCOMP', 0)

def f2u(x): return struct.unpack('<I', struct.pack('<f', x))[0]
def hexf(x): return hex(f2u(x))
def pr(r): return f'v[{r}:{r+1}]'
def q4(r): return f'v[{r}:{r+3}]'

def srd(p, r, lo, size):
    p.I(f's_mov_b32 s{r}, s{lo}', f's_and_b32 s{r+1}, s{lo+1}, 0xffff', f's_mov_b32 s{r+2}, {size}', f's_mov_b32 s{r+3}, 0x20000')

def interleave(*streams):
    out = []
    for i in range(max(len(s) for s in streams)):
        for s in streams:
            if i < len(s): out.append(s[i])
    return out

def get_tag(p):
    p.I('s_waitcnt lgkmcnt(0)', f's_mul_i32 s{TAG}, s{SE}, 0x9e3779b1', f's_add_u32 s{TAG}, s{TAG}, 0x7f4a7c15')

def stamp(p, i):
    if not STAMP: return
    p.I('s_memrealtime s[96:97]', 's_waitcnt lgkmcnt(0)', f'v_writelane_b32 v255, s96, {i}',
        's_memtime s[96:97]', 's_waitcnt lgkmcnt(0)', f'v_writelane_b32 v255, s96, {16+i}')

def stamp_flush(p):
    if not STAMP: return
    if opt('DBGSTAMP', 0):
        lab = f'DBG{len(p.ins)}'
        W = opt('DBGWG', 0)
        srd(p, 64, PDBG, 64)
        p.I(f's_cmp_lg_u32 s2, {W}', f's_cbranch_scc1 {lab}', 's_cmp_eq_u32 s24, 0', f's_cbranch_scc1 {lab}_C', 's_cmp_lg_u32 s24, 4', f's_cbranch_scc1 {lab}')
        for k, ln in enumerate((3, 4, 8)):
            p.I(f'v_readlane_b32 s68, v255, {ln}', 's_nop 3', 'v_mov_b32 v254, s68', 'v_mov_b32 v253, 0', f'buffer_store_dword v254, v253, s[64:67], 0 offen offset:{4*(12+k)}')
        p.I(f's_branch {lab}')
        p.label(f'{lab}_C')
        p.I('v_lshlrev_b32 v254, 2, v1', 'v_add_u32 v254, 4, v254', 's_mov_b64 exec, 0x7ff', 'buffer_store_dword v255, v254, s[64:67], 0 offen', 's_mov_b64 exec, -1')
        p.label(lab)
        return
    p.I(f's_add_u32 s64, s{PWS}, {WS_STAMP}', f's_addc_u32 s65, s{PWS+1}, 0', 's_and_b32 s65, s65, 0xffff', 's_mov_b32 s66, 0x100000', 's_mov_b32 s67, 0x20000',
        's_lshl_b32 s68, s2, 3', 's_add_u32 s68, s68, s24', 's_lshl_b32 s68, s68, 8',
        'v_lshlrev_b32 v254, 2, v1', 'buffer_store_dword v255, v254, s[64:67], s68 offen')

class Item:
    def __init__(self, srd, voff, srun, goff, lds_off, aux=''):
        self.srd, self.voff, self.srun, self.goff, self.lds_off, self.aux = srd, voff, srun, goff, lds_off, aux

def gen_loader(p, pfx, phases, NS, stage_bytes, s_slot='s34', s_tmp='s35', s_cnt='s36', after_prologue=None):
    Dn = len(phases[0][1]); assert all(len(ph[1]) == Dn for ph in phases)
    N = sum(ph[0] for ph in phases); assert (NS - 1)*Dn <= 63
    ring = NS*stage_bytes
    def issue(items, adv):
        for it in items:
            p.I(f's_add_u32 m0, {s_slot}, {it.lds_off}')
            if it.goff:
                p.I(f's_add_u32 {s_tmp}, {it.srun}, {it.goff}'); so = s_tmp
            else:
                p.I('s_nop 0'); so = it.srun
            p.I(f'buffer_load_dwordx4 {it.voff}, {it.srd}, {so} offen {it.aux} lds')
        for (sr, st) in adv: p.I(f's_add_u32 {sr}, {sr}, {st}')
        p.I(f's_add_u32 {s_slot}, {s_slot}, {stage_bytes}', f's_cmp_eq_u32 {s_slot}, {ring}', f's_cselect_b32 {s_slot}, 0, {s_slot}')
    p.I(f's_mov_b32 {s_slot}, 0')
    j = 0; lab = 0
    for n, items, adv in phases:
        npro = max(0, min(n, NS - 1 - j)); nste = n - npro
        for cnt, steady in ((npro, False), (nste, True)):
            if cnt == 0: continue
            if steady and after_prologue is not None and j + npro == NS - 1 and j < NS - 1 + (0 if npro else 1) and npro:
                after_prologue(p)
            L = f'{pfx}_L{lab}'; lab += 1
            if cnt > 1:
                p.I(f's_mov_b32 {s_cnt}, {cnt}'); p.label(L)
            if steady: p.I(f's_waitcnt vmcnt({(NS-2)*Dn})', 's_barrier')
            issue(items, adv)
            if cnt > 1: p.I(f's_sub_u32 {s_cnt}, {s_cnt}, 1', f's_cmp_lg_u32 {s_cnt}, 0', f's_cbranch_scc1 {L}')
        j += n
    for i in range(max(0, N - NS + 1), N):
        p.I(f's_waitcnt vmcnt({(N-1-i)*Dn})', 's_barrier')

class DS:
    def __init__(self, p): self.p = p; self.q = []; self.done = 0
    def issue(self, text, tag): self.p.I(text); self.q.append(tag)
    def need(self, *tags):
        last = max([k for t in tags for k, x in enumerate(self.q) if x == t], default=-1)
        if last < self.done: return
        n = min(len(self.q) - 1 - last, 15)
        self.p.I(f's_waitcnt lgkmcnt({n})'); self.done = len(self.q) - n
    def drain(self):
        if self.done < len(self.q): self.p.I('s_waitcnt lgkmcnt(0)')
        self.q = []; self.done = 0

def poll(p, lab, vaddr, vtmp, scnt, soffs=('0',)):
    p.I(f's_mov_b32 {scnt}, 0')
    p.label(lab)
    for k, so in enumerate(soffs): p.I(f'buffer_load_dword v{vtmp+k}, v{vaddr}, {WSS}, {so} offen sc1')
    p.I('s_waitcnt vmcnt(0)')
    if len(soffs) == 1:
        p.I(f'v_cmp_ne_u32 vcc, s{TAG}, v{vtmp}')
    else:
        for k in range(len(soffs)): p.I(f'v_xor_b32 v{vtmp+k}, s{TAG}, v{vtmp+k}')
        for k in range(1, len(soffs)): p.I(f'v_or_b32 v{vtmp}, v{vtmp}, v{vtmp+k}')
        p.I(f'v_cmp_ne_u32 vcc, 0, v{vtmp}')
    p.I(f's_add_u32 {scnt}, {scnt}, 1', 's_cmp_eq_u64 vcc, 0', f's_cbranch_scc1 {lab}_OK',
        f's_cmp_lt_u32 {scnt}, 0x8000', f's_cbranch_scc0 {lab}_OK', f's_sleep {opt("SLEEP", 2)}', f's_branch {lab}')
    p.label(f'{lab}_OK')

def publish(p, flag_soff, vt):
    p.I('s_waitcnt vmcnt(0)', 's_mov_b64 exec, 1', f'v_mov_b32 v{vt}, 0', f'v_mov_b32 v{vt+1}, s{TAG}',
        f'buffer_store_dword v{vt+1}, v{vt}, {WSS}, {flag_soff} offen sc1', 's_mov_b64 exec, -1')

def publish_join(p, lab, nwaves, cnt, flag_soff, vt, st, replicas=1, rstride=0):
    p.I('s_waitcnt vmcnt(0)', 's_mov_b64 exec, 1',
        f'v_mov_b32 v{vt}, {LDS_CNT + 4*cnt}', f'v_mov_b32 v{vt+1}, 1',
        f'ds_add_rtn_u32 v{vt+1}, v{vt}, v{vt+1}', 's_waitcnt lgkmcnt(0)',
        f'v_readfirstlane_b32 {st}, v{vt+1}', f's_cmp_lg_u32 {st}, {nwaves-1}', f's_cbranch_scc1 {lab}',
        f's_mov_b64 exec, {(1 << replicas) - 1}', f'v_mul_u32_u24 v{vt}, {rstride}, v1', f'v_mov_b32 v{vt+1}, s{TAG}',
        f'buffer_store_dword v{vt+1}, v{vt}, {WSS}, {flag_soff} offen sc1')
    p.label(lab)
    p.I('s_mov_b64 exec, -1')

def lds_go_set(p, word, vt):
    p.I(f'v_mov_b32 v{vt}, {LDS_CNT + 4*word}', f'v_mov_b32 v{vt+1}, 1', f'ds_write_b32 v{vt}, v{vt+1}', 's_waitcnt lgkmcnt(0)')

def lds_go_wait(p, lab, word, vt, scnt, st, atleast=1):
    p.I(f'v_mov_b32 v{vt}, {LDS_CNT + 4*word}', f's_mov_b32 {scnt}, 0')
    p.label(lab)
    p.I(f'ds_read_b32 v{vt+1}, v{vt}', 's_waitcnt lgkmcnt(0)', f'v_readfirstlane_b32 {st}, v{vt+1}', f's_add_u32 {scnt}, {scnt}, 1',
        f's_cmp_ge_u32 {st}, {atleast}', f's_cbranch_scc1 {lab}_OK', f's_cmp_lt_u32 {scnt}, 0x400000', f's_cbranch_scc0 {lab}_OK', 's_sleep 1', f's_branch {lab}')
    p.label(f'{lab}_OK')
```

```python
from base import *

PREP_LDS_WQ = 133120
PREP_LDS_WO = PREP_LDS_WQ
HS = 'sc1'

def allreduce16(p, regs):
    for sh in (8, 4, 2, 1):
        for r in regs:
            p.I(f'v_add_f32_dpp v{r}, v{r}, v{r} row_ror:{sh} row_mask:0xf bank_mask:0xf')

def gen_ln(p):
    p.label('P0_LN')
    p.I('v_and_b32 v2, 15, v1',
        'v_lshrrev_b32 v3, 4, v1',
        's_lshl_b32 s25, s2, 3', 's_lshl_b32 s26, s24, 2', 's_add_u32 s25, s25, s26',
        'v_add_u32 v3, s25, v3',
        'v_mul_u32_u24 v4, 1280, v3',
        'v_lshl_add_u32 v4, v2, 4, v4')
    srd(p, 20, PX, SZ_X)
    IN, Fv, T, T2, HO, HP = 8, 28, 92, 104, 112, 72
    for i in range(5):
        p.I(f'buffer_load_dwordx4 {q4(IN+4*i)}, v4, s[20:23], 0 offen offset:{i*256}')
    p.I('v_lshrrev_b32 v5, 4, v3', 'v_mul_u32_u24 v5, 20480, v5', 'v_and_b32 v6, 15, v3', 'v_lshl_add_u32 v5, v6, 4, v5',
        'v_lshrrev_b32 v6, 2, v2', 'v_lshl_add_u32 v5, v6, 10, v5', 'v_and_b32 v6, 3, v2', 'v_lshl_add_u32 v5, v6, 8, v5',
        f'v_add_u32 v5, {WS_XN}, v5')
    p.I('v_mul_u32_u24 v7, 160, v3', f'v_add_u32 v7, {WS_HT}, v7', 's_mov_b32 s27, 327680')
    for i in range(5):
        p.I(f'v_add_u32 v6, {16*i}, v2', 'v_mul_u32_u24 v68, 6554, v6', 'v_lshrrev_b32 v68, 16, v68',
            'v_mul_u32_u24 v69, 10, v68', 'v_sub_u32 v6, v6, v69', 'v_mul_lo_u32 v68, v68, s27',
            'v_lshl_add_u32 v68, v6, 4, v68', f'v_add_u32 v{HO+i}, v68, v7')
    for i in range(1, 5): p.I(f's_mov_b32 s{30+i}, {i*4096}')
    p.I('v_mov_b32 v70, 0x3acccccd', 'v_mov_b32 v71, 0x3727c5ac')
    for i in range(5):
        p.I(f's_waitcnt vmcnt({4-i})')
        for j in range(4*i, 4*i+4):
            p.I(f'v_lshlrev_b32 v{Fv+2*j}, 16, v{IN+j}', f'v_and_b32 v{Fv+2*j+1}, 0xffff0000, v{IN+j}')
    def chain(dst, sq):
        for c in range(4):
            a = dst + 2*c
            p.I(f'v_pk_mul_f32 {pr(a)}, {pr(Fv+2*c)}, {pr(Fv+2*c)}' if sq else f'v_pk_add_f32 {pr(a)}, {pr(Fv+2*c)}, {pr(Fv+2*(c+4))}')
        for j in range(4 if sq else 8, 20):
            a = dst + 2*(j % 4)
            p.I(f'v_pk_fma_f32 {pr(a)}, {pr(Fv+2*j)}, {pr(Fv+2*j)}, {pr(a)}' if sq else f'v_pk_add_f32 {pr(a)}, {pr(a)}, {pr(Fv+2*j)}')
        p.I(f'v_pk_add_f32 {pr(dst)}, {pr(dst)}, {pr(dst+2)}', f'v_pk_add_f32 {pr(dst+4)}, {pr(dst+4)}, {pr(dst+6)}',
            f'v_pk_add_f32 {pr(dst)}, {pr(dst)}, {pr(dst+4)}', f'v_add_f32 v{dst}, v{dst}, v{dst+1}')
    chain(T, False); allreduce16(p, [T])
    p.I(f'v_mul_f32 v{T}, v70, v{T}', f'v_sub_f32 v100, 0, v{T}')
    for j in range(20): p.I(f'v_pk_add_f32 {pr(Fv+2*j)}, {pr(Fv+2*j)}, v[100:101] op_sel_hi:[1,0]')
    chain(T, True); allreduce16(p, [T])
    p.I(f'v_fma_f32 v{T}, v{T}, v70, v71', f'v_rsq_f32 v102, v{T}')
    for j in range(20): p.I(f'v_pk_mul_f32 {pr(Fv+2*j)}, {pr(Fv+2*j)}, v[102:103] op_sel_hi:[1,0]')
    for j in range(20): p.I(f'v_cvt_pk_bf16_f32 v{IN+j}, v{Fv+2*j}, v{Fv+2*j+1}')
    for i in range(5):
        p.I(f'buffer_store_dwordx4 {q4(IN+4*i)}, v5, {WSS}, {"0" if i == 0 else f"s{30+i}"} offen {HS}')
    chain(T, False); chain(T2, True); allreduce16(p, [T, T2])
    p.I(f'v_mul_f32 v{T}, v70, v{T}', f'v_fma_f32 v{T2}, v{T2}, v70, v71', f'v_fma_f32 v{T2}, -v{T}, v{T}, v{T2}',
        f'v_rsq_f32 v102, v{T2}', f'v_mul_f32 v100, v{T}, v102', 'v_sub_f32 v100, 0, v100')
    for j in range(20): p.I(f'v_pk_fma_f32 {pr(Fv+2*j)}, {pr(Fv+2*j)}, v[102:103], v[100:101] op_sel_hi:[1,0,0]')
    for j in range(20): p.I(f'v_cvt_pk_bf16_f32 v{HP+j}, v{Fv+2*j}, v{Fv+2*j+1}')
    for i in range(5):
        p.I(f'buffer_store_dwordx4 {q4(HP+4*i)}, v{HO+i}, {WSS}, 0 offen {HS}')
    stamp(p, 1)
    get_tag(p)
    p.I(f's_lshl_b32 s30, s2, 4')
    if WS_FL: p.I(f's_add_u32 s30, s30, {WS_FL}')
    publish_join(p, 'P0_LNSIG', 2, 0, 's30', 2, 's31', replicas=8, rstride=4096)
    p.I('s_branch P0_DONE')

def gather_rows(p, dst):
    p.I(f'v_add_u32 v2, {64*dst}, v1', 'v_mul_u32_u24 v3, 6554, v2', 'v_lshrrev_b32 v3, 16, v3',
        'v_mul_u32_u24 v4, 10, v3', 'v_sub_u32 v4, v2, v4')

def gen_wo(p):
    p.label('P0_WO')
    p.I('s_cmp_lt_u32 s2, 96', 's_cbranch_scc1 P0_DONE')
    if opt('WAIT_LN', 1): lds_go_wait(p, 'P0_OWAIT', 0, 6, 's37', 's38', atleast=2)
    p.I('s_sub_u32 s25, s2, 96', 's_and_b32 s26, s25, 7', 's_lshr_b32 s27, s25, 3',
        's_mul_i32 s28, s27, 52', 's_lshr_b32 s28, s28, 8',
        's_mul_i32 s29, s28, 5', 's_sub_u32 s29, s27, s29',
        's_mul_i32 s30, s28, 160', 's_mul_i32 s31, s29, 40', 's_add_u32 s31, s31, s30', 's_add_u32 s30, s30, 16',
        's_cmp_eq_u32 s29, 4', 's_cselect_b32 s30, s30, s31', 's_cselect_b32 s31, 80, 20', 's_cselect_b32 s32, 20, 4')
    srd(p, 20, PWO, SZ_WO)
    p.I('s_mul_i32 s33, s26, 160', 's_movk_i32 s35, 1280')
    for j in range(5):
        gather_rows(p, j)
        p.I('v_lshrrev_b32 v5, 4, v3', 'v_mul_lo_u32 v5, v5, s31', 'v_bfe_u32 v6, v3, 2, 2', 'v_mul_lo_u32 v6, v6, s32',
            'v_and_b32 v7, 3, v3', 'v_add3_u32 v5, v5, v6, v7', 'v_add_u32 v5, s30, v5', 'v_mul_lo_u32 v5, v5, s35',
            'v_lshl_add_u32 v5, v4, 4, v5', f's_mov_b32 m0, {PREP_LDS_WO + j*1024}', 's_nop 0',
            'buffer_load_dwordx4 v5, s[20:23], s33 offen lds')
    p.I('v_lshrrev_b32 v2, 2, v1', 'v_mul_u32_u24 v2, 160, v2', 'v_and_b32 v3, 3, v1', 'v_lshl_add_u32 v2, v3, 3, v2',
        f'v_add_u32 v2, {PREP_LDS_WO}, v2', 'v_lshlrev_b32 v3, 4, v1',
        's_mul_i32 s36, s26, 20', 's_add_u32 s36, s36, s27', 's_mul_i32 s36, s36, 5120', f's_add_u32 s36, s36, {WS_WOF}',
        's_waitcnt vmcnt(0)')
    for mb in range(5):
        p.I(f'ds_read_b64_tr_b16 {pr(8+4*mb)}, v2 offset:{32*mb}', f'ds_read_b64_tr_b16 {pr(10+4*mb)}, v2 offset:{32*mb+2560}')
    for mb in range(5):
        p.I(f's_waitcnt lgkmcnt({8-2*mb})')
        if mb == 4: p.I('s_add_u32 s36, s36, 4096')
        p.I(f'buffer_store_dwordx4 {q4(8+4*mb)}, v3, {WSS}, s36 offen offset:{(mb*1024) % 4096} {HS}')
    stamp(p, 1)
    get_tag(p)
    p.I('s_lshl_b32 s30, s26, 5', 's_add_u32 s30, s30, s27', 's_lshl_b32 s30, s30, 4', f's_add_u32 s30, s30, {WS_FO}')
    publish(p, 's30', 2)
    p.I('s_branch P0_DONE')

def gen_wait_ln(p, code_begin, code_end):
    if opt('PF_CODE', 1):
        p.I('s_cmp_ge_u32 s2, 8', 's_cbranch_scc1 P0_NOCODE', 's_cmp_lg_u32 s24, 7', 's_cbranch_scc1 P0_NOCODE', 's_getpc_b64 s[46:47]')
        p.label('P0_PC')
        p.I(f's_add_u32 s46, s46, {code_begin}-P0_PC', 's_addc_u32 s47, s47, 0', f's_mov_b32 s48, {code_end}-{code_begin}')
        for i in range(4):
            p.I('v_lshlrev_b32 v42, 7, v1', f'v_add_u32 v42, {i*8192}, v42', 'v_min_u32 v42, s48, v42', 'v_mov_b32 v43, s47',
                'v_add_co_u32 v42, vcc, s46, v42', 'v_addc_co_u32 v43, vcc, 0, v43, vcc', 'global_load_dword v253, v[42:43], off')
        p.label('P0_NOCODE')
    get_tag(p)
    if opt('WAIT_LN', 1): lds_go_wait(p, 'P0_TWAIT', 0, 6, 's37', 's38', atleast=2)

def gen_warm(p):
    p.label('P0_WARM')
    def go(which):
        for i in range(4):
            w = which
            if i >= 2: w = w.replace('wq', '')
            if not w: continue
            p.I(f's_add_u32 s49, s2, {256*i}')
            touch_weights(p, 's49', w)
    if opt('PF_T0', ''): go(opt('PF_T0', ''))
    if opt('PF_T1', 'wqw1'):
        lds_go_wait(p, 'P0_WWAIT', 0, 6, 's37', 's38', atleast=2)
        go(opt('PF_T1', 'wqw1'))
    p.I('s_branch P0_DONE')

def touch_weights(p, sslot, which):
    p.I(f's_lshl_b32 s39, {sslot}, 13', 'v_lshlrev_b32 v252, 7, v1')
    if 'w1' in which and opt('PF_W1', 1):
        srd(p, 44, PW1, SZ_W1)
        p.I('buffer_load_dword v253, v252, s[44:47], s39 offen')
    if 'wq' in which and opt('PF_WQ', 1):
        srd(p, 44, PWQ, SZ_WQKV)
        p.I('buffer_load_dword v253, v252, s[44:47], s39 offen')
    if 'w2' in which and opt('PF_W2', 1):
        srd(p, 44, PW2, SZ_W2)
        p.I('buffer_load_dword v253, v252, s[44:47], s39 offen')
```

```python
from base import *
import p0
HS = 'sc1'
U_NS, U_STAGE, U_N = 6, 10240 + 16384, 32
Q_NS, Q_STAGE, Q_N = 6, 9216 + 15360, 20
SKIP = {0: None, 1: ('v_mfma', 'ds_read'), 2: ('v_mfma',), 3: ('ds_read',)}[NOCOMP]

def loader_end(p, slot=None):
    if slot and 'w2' in opt('PF_TAIL', ''):
        slot(p); p0.touch_weights(p, 's38', 'w2')
    stamp(p, 4)
    p.I('s_barrier', 's_branch P3_ENTRY')

def gen_u_loaders(p):
    p.label('P1_UL')
    srd(p, 20, PW1, SZ_W1)
    W1S = 's[20:23]'
    p.I('v_lshlrev_b32 v2, 4, v1',
        'v_lshrrev_b32 v3, 3, v1', 'v_bfe_u32 v4, v1, 4, 2', 'v_lshlrev_b32 v4, 1, v4', 'v_and_b32 v5, 7, v1', 'v_xor_b32 v4, v4, v5',
        'v_lshlrev_b32 v4, 4, v4', 'v_mul_u32_u24 v3, 3456, v3', 'v_add_u32 v3, v3, v4',
        's_mul_i32 s30, s25, 327680', f's_add_u32 s30, s30, {WS_HT}', 's_lshl_b32 s31, s26, 8')
    hitems = [Item(WSS, 'v2', 's30', j*1024, j*1024, HS) for j in range(10)]
    witems = [Item(W1S, 'v3', 's31', m*8*3456 + hf*128, 10240 + hf*8192 + m*1024) for hf in range(2) for m in range(8)]
    split = [hitems[0:5], hitems[5:10], witems[0:8], witems[8:16]]
    get_tag(p)
    for L in range(4):
        if L < 3: p.I(f's_cmp_lg_u32 s24, {4+L}', f's_cbranch_scc1 P1_UL{L}_NEXT')
        if L == 0:
            p.I('v_lshlrev_b32 v6, 4, v1', 's_and_b32 s40, s2, 7', 's_lshl_b32 s40, s40, 12')
            if WS_FL: p.I(f's_add_u32 s40, s40, {WS_FL}')
            p.I('s_add_u32 s41, s40, 1024', 's_add_u32 s42, s40, 2048', 's_add_u32 s43, s40, 3072')
            poll(p, 'P1_UPOLL', 6, 8, 's37', soffs=('s40', 's41', 's42', 's43'))
            lds_go_set(p, 2, 6)
        elif L == 1 or opt('W1_LATE', 0):
            lds_go_wait(p, f'P1_UGOA{L}', 2, 6, 's37', 's38')
        stamp(p, 3)
        def after(p, L=L):
            if L >= 2: lds_go_wait(p, f'P1_UGO{L}', 2, 6, 's37', 's38')
            p.I('s_mul_i32 s38, s25, 14', 's_add_u32 s38, s38, s26', 's_add_u32 s38, s38, 128', 's_lshl_b32 s38, s38, 2', f's_add_u32 s38, s38, {L}')
            if opt('PF_P1', ''): p0.touch_weights(p, 's38', opt('PF_P1', ''))
        gen_loader(p, f'P1_UL{L}', [(U_N, split[L], [('s30', 10240), ('s31', 64*3456)])], U_NS, U_STAGE, after_prologue=after)
        loader_end(p, lambda p, L=L: p.I('s_mul_i32 s38, s25, 14', 's_add_u32 s38, s38, s26', 's_add_u32 s38, s38, 128', 's_lshl_b32 s38, s38, 2', f's_add_u32 s38, s38, {L}'))
        if L < 3: p.label(f'P1_UL{L}_NEXT')

def gen_u_consumer(p):
    p.label('P1_UC')
    ACC = 8; SET = [48, 76]; VA0, VA1, VB = 2, 3, 4; A0, A1, B_ = 104, 105, 106; BIAS = 108
    srd(p, 20, PB1, F*2)
    p.I('v_lshrrev_b32 v5, 4, v1', 'v_lshlrev_b32 v5, 3, v5',
        's_lshl_b32 s30, s26, 8', 's_lshl_b32 s31, s24, 6', 's_add_u32 s30, s30, s31',
        'buffer_load_dwordx2 v[116:117], v5, s[20:23], s30 offen', 'buffer_load_dwordx2 v[118:119], v5, s[20:23], s30 offen offset:32')
    p.I('v_lshrrev_b32 v7, 2, v1', 'v_bfe_u32 v5, v1, 3, 2', 's_and_b32 s30, s24, 1', 's_lshl_b32 s30, s30, 1',
        'v_xor_b32 v5, s30, v5', 'v_lshlrev_b32 v5, 5, v5', 'v_lshl_add_u32 v5, v7, 7, v5', 'v_and_b32 v6, 3, v1', 'v_lshl_add_u32 v5, v6, 3, v5',
        's_lshr_b32 s30, s24, 1', 's_lshl_b32 s30, s30, 13', 's_add_u32 s30, s30, 10240',
        f'v_add_u32 v{VA0}, s30, v5', f'v_xor_b32 v{VA1}, 32, v{VA0}',
        'v_mul_u32_u24 v7, 160, v7', f'v_lshl_add_u32 v{VB}, v6, 3, v7')
    for r in range(ACC, ACC+40): p.I(f'v_mov_b32 v{r}, 0')
    for r in range(SET[1], SET[1]+28): p.I(f'v_mov_b32 v{r}, 0')
    p.I('s_mov_b32 s34, 0', f's_mov_b32 s35, {U_N}')
    def mfmas(s):
        out = []
        for db in range(5):
            for fb in range(2):
                a = SET[s] + 4*fb; b = SET[s] + 8 + 4*db; c = ACC + (fb*5+db)*4
                out.append((f'v_mfma_f32_16x16x32_bf16 {q4(c)}, {q4(a)}, {q4(b)}, {q4(c)}', fb, db))
        return out
    def reads(s, e):
        out = []
        for fb in range(2):
            a = SET[s] + 4*fb; va = (A0, A1)[fb]
            out.append((f'ds_read_b64_tr_b16 {pr(a)}, v{va} offset:{e*4096}', (s, 'A', fb)))
            out.append((f'ds_read_b64_tr_b16 {pr(a+2)}, v{va} offset:{e*4096+2048}', (s, 'A', fb)))
        for db in range(5):
            b = SET[s] + 8 + 4*db
            out.append((f'ds_read_b64_tr_b16 {pr(b)}, v{B_} offset:{e*5120+db*32}', (s, 'B', db)))
            out.append((f'ds_read_b64_tr_b16 {pr(b+2)}, v{B_} offset:{e*5120+db*32+2560}', (s, 'B', db)))
        return out
    stamp(p, 3)
    p.skip = SKIP
    p.label('P1_UCL')
    ds = DS(p)
    p.I('s_barrier', f'v_add_u32 v{A0}, s34, v{VA0}', f'v_add_u32 v{A1}, s34, v{VA1}', f'v_add_u32 v{B_}, s34, v{VB}')
    r0 = reads(0, 0); k = 0
    for mi, m in enumerate(mfmas(1)):
        for _ in range(2 if mi < 4 else 1):
            if k < len(r0): ds.issue(*r0[k]); k += 1
        p.I(m[0])
    while k < len(r0): ds.issue(*r0[k]); k += 1
    r1 = reads(1, 1); k = 0
    p.I(f's_add_u32 s34, s34, {U_STAGE}', f's_cmp_eq_u32 s34, {U_NS*U_STAGE}', 's_cselect_b32 s34, 0, s34')
    for mi, (m, fb, db) in enumerate(mfmas(0)):
        for _ in range(2 if mi < 4 else 1):
            if k < len(r1): ds.issue(*r1[k]); k += 1
        ds.need((0, 'A', fb), (0, 'B', db))
        p.I(m)
    while k < len(r1): ds.issue(*r1[k]); k += 1
    ds.drain()
    p.I('s_sub_u32 s35, s35, 1', 's_cmp_lg_u32 s35, 0', 's_cbranch_scc1 P1_UCL')
    p.skip = None
    p.I('s_barrier')
    for m in mfmas(1): p.I(m[0])
    stamp(p, 4)
    p.I('s_lshl_b32 s30, s26, 2', 's_add_u32 s30, s30, s24', 's_cmp_ge_u32 s30, 54', 's_cbranch_scc1 P1_USKIP',
        's_mul_i32 s31, s25, 54', 's_add_u32 s30, s30, s31', 's_mul_i32 s30, s30, 5120', f's_add_u32 s30, s30, {WS_UF}',
        'v_lshlrev_b32 v5, 4, v1', 's_waitcnt vmcnt(0)')
    for fb in range(2):
        x = 116 + 2*fb; b = BIAS + 4*fb
        p.I(f'v_lshlrev_b32 v{b}, 16, v{x}', f'v_and_b32 v{b+1}, 0xffff0000, v{x}',
            f'v_lshlrev_b32 v{b+2}, 16, v{x+1}', f'v_and_b32 v{b+3}, 0xffff0000, v{x+1}')
    c0 = -2.0*0.7978845608028654*1.4426950408889634
    c1 = c0*0.044715
    C0, C1, ONE = 120, 122, 124
    p.I(f'v_mov_b32 v{C0}, {hexf(c0)}', f'v_mov_b32 v{C1}, {hexf(c1)}', f'v_mov_b32 v{ONE}, 1.0')
    def gelu_pair(x, t, b):
        return [f'v_pk_add_f32 {pr(x)}, {pr(x)}, {pr(b)}',
                f'v_pk_mul_f32 {pr(t)}, {pr(x)}, {pr(x)}',
                f'v_pk_fma_f32 {pr(t)}, {pr(t)}, {pr(C1)}, {pr(C0)} op_sel_hi:[1,0,0]',
                f'v_pk_mul_f32 {pr(t)}, {pr(t)}, {pr(x)}',
                f'v_exp_f32 v{t}, v{t}', f'v_exp_f32 v{t+1}, v{t+1}',
                f'v_pk_add_f32 {pr(t)}, {pr(t)}, {pr(ONE)} op_sel_hi:[1,0]',
                f'v_rcp_f32 v{t}, v{t}', f'v_rcp_f32 v{t+1}, v{t+1}',
                f'v_pk_mul_f32 {pr(x)}, {pr(x)}, {pr(t)}']
    for db in range(5):
        streams = []
        for fb in range(2):
            for hp in range(2):
                streams.append(gelu_pair(ACC + (fb*5+db)*4 + 2*hp, 48 + 2*(fb*2+hp) + 8*(db % 2), BIAS + 4*fb + 2*hp))
        for t in interleave(*streams): p.I(t)
        o = 64 + 4*(db % 3)
        for fb in range(2):
            x = ACC + (fb*5+db)*4
            p.I(f'v_cvt_pk_bf16_f32 v{o+2*fb}, v{x}, v{x+1}', f'v_cvt_pk_bf16_f32 v{o+2*fb+1}, v{x+2}, v{x+3}')
        if db == 4: p.I('s_add_u32 s30, s30, 4096')
        p.I(f'buffer_store_dwordx4 {q4(o)}, v5, {WSS}, s30 offen offset:{(db*1024) % 4096} {HS}')
    p.label('P1_USKIP')
    stamp(p, 5)
    p.I('s_lshl_b32 s30, s25, 8', 's_lshl_b32 s31, s26, 4', 's_add_u32 s30, s30, s31', f's_add_u32 s30, s30, {WS_FU}')
    publish_join(p, 'P1_USIG', 4, 1, 's30', 2, 's31')
    stamp(p, 6)
    p.I('s_branch P3_ENTRY')

def gen_q_loaders(p):
    p.label('P1_QL')
    srd(p, 20, PWQ, SZ_WQKV)
    WQS = 's[20:23]'
    p.I('v_lshlrev_b32 v2, 4, v1',
        's_lshl_b32 s30, s25, 3', 's_mul_i32 s31, s30, 20480', 's_sub_u32 s32, s31, 20480',
        's_cmp_eq_u32 s25, 0', 's_cselect_b32 s32, s31, s32',
        f's_add_u32 s31, s31, {WS_XN}', f's_add_u32 s32, s32, {WS_XN}',
        's_mul_i32 s33, s26, 160')
    xitems = [Item(WSS, 'v2', 's32', 0, 0, HS)] + [Item(WSS, 'v2', 's31', (i-1)*20480, i*1024, HS) for i in range(1, 9)]
    witems = [Item(WQS, f'v{10+j}', 's33', 0, 9216 + j*1024) for j in range(15)]
    split = [xitems[0:6], xitems[6:9] + witems[0:3], witems[3:9], witems[9:15]]
    def wvoff(j):
        p.I(f'v_add_u32 v4, {64*j}, v1', 'v_mul_u32_u24 v5, 2185, v4', 'v_lshrrev_b32 v5, 16, v5', 'v_mul_u32_u24 v6, 30, v5', 'v_sub_u32 v6, v4, v6',
            'v_mul_u32_u24 v7, 6554, v6', 'v_lshrrev_b32 v7, 16, v7', 'v_mul_u32_u24 v8, 10, v7', 'v_sub_u32 v6, v6, v8',
            'v_mul_u32_u24 v7, 1280, v7', 'v_lshl_add_u32 v6, v6, 4, v7',
            'v_bfe_u32 v7, v5, 2, 2', 'v_lshlrev_b32 v7, 3, v7', 'v_lshrrev_b32 v8, 4, v5', 'v_lshl_add_u32 v7, v8, 2, v7',
            'v_and_b32 v8, 3, v5', 'v_add_u32 v7, v7, v8', 'v_mul_u32_u24 v7, 3840, v7', f'v_add_u32 v{10+j}, v6, v7')
    assert all((q*2185) >> 16 == q//30 for q in range(960))
    def go(L):
        if L == 0:
            p.I('v_min_u32 v7, 17, v1', 's_lshl_b32 s37, s25, 4', 's_sub_u32 s37, s37, 2', 'v_add_u32 v7, s37, v7',
                'v_max_i32 v7, 0, v7', 'v_lshlrev_b32 v6, 4, v7', 's_and_b32 s40, s2, 7', 's_lshl_b32 s40, s40, 12')
            if WS_FL: p.I(f's_add_u32 s40, s40, {WS_FL}')
            poll(p, 'P1_QPOLL', 6, 8, 's37', soffs=('s40',))
            lds_go_set(p, 2, 6)
        elif L == 1 or opt('WQ_LATE', 0):
            lds_go_wait(p, f'P1_QW{L}', 2, 6, 's37', 's38')
        stamp(p, 3)
    for L in range(4):
        if L < 3: p.I(f's_cmp_lg_u32 s24, {4+L}', f's_cbranch_scc1 P1_QL{L}_NEXT')
        for it in split[L]:
            if it.srd == WQS: wvoff(int(it.voff[1:]) - 10)
        go(L)
        def after(p, L=L):
            p.I('s_lshl_b32 s38, s25, 3', 's_add_u32 s38, s38, s26', 's_lshl_b32 s38, s38, 2', f's_add_u32 s38, s38, {L}')
            if opt('PF_P1', ''): p0.touch_weights(p, 's38', opt('PF_P1', ''))
        gen_loader(p, f'P1_QL{L}', [(Q_N, split[L], [('s31', 1024), ('s32', 1024), ('s33', 32*3840)])], Q_NS, Q_STAGE, after_prologue=after)
        loader_end(p, lambda p, L=L: p.I('s_lshl_b32 s38, s25, 3', 's_add_u32 s38, s38, s26', 's_lshl_b32 s38, s38, 2', f's_add_u32 s38, s38, {L}'))
        if L < 3: p.label(f'P1_QL{L}_NEXT')

def gen_q_consumer(p):
    p.label('P1_QC')
    ACC = 8
    WS_ = [152, 168]; XS = [[184, 188, 192], [196, 200, 204]]
    VX, VWQ, VWR, AX, AWQ, AWR = 2, 3, 4, 208, 209, 210
    acc = lambda i, b: ACC + 16*i + 4*b
    p.I(f'v_lshlrev_b32 v{VX}, 4, v1', 'v_lshrrev_b32 v5, 2, v1', 'v_mul_u32_u24 v5, 480, v5', 'v_and_b32 v6, 3, v1',
        's_mul_i32 s30, s24, 40', 's_add_u32 s30, s30, 9216', 'v_add_u32 v5, s30, v5', f'v_lshl_add_u32 v{VWQ}, v6, 3, v5',
        'v_min_u32 v6, 2, v6', 'v_mul_u32_u24 v6, 160, v6', f'v_add3_u32 v{VWR}, v5, v6, 32')
    for r in range(ACC, ACC+144): p.I(f'v_mov_b32 v{r}, 0')
    for r in range(WS_[1], WS_[1]+16): p.I(f'v_mov_b32 v{r}, 0')
    for b in XS[1]:
        for r in range(b, b+4): p.I(f'v_mov_b32 v{r}, 0')
    p.I('s_mov_b32 s34, 0', f's_mov_b32 s35, {Q_N//2}')
    def mf(i, b, wset, xreg):
        c = acc(i, b); w = wset + 4*b
        if b == 3: return f'v_mfma_f32_16x16x32_bf16 {q4(c)}, {q4(xreg)}, {q4(w)}, {q4(c)}'
        return f'v_mfma_f32_16x16x32_bf16 {q4(c)}, {q4(w)}, {q4(xreg)}, {q4(c)}'
    def wreads(ws):
        out = []
        for b, (va, off) in enumerate(((AWQ, 0), (AWQ, 160), (AWR, 0), (AWQ, 320))):
            out.append((f'ds_read_b64_tr_b16 {pr(ws+4*b)}, v{va} offset:{off}', ('W', b)))
            out.append((f'ds_read_b64_tr_b16 {pr(ws+4*b+2)}, v{va} offset:{off+7680}', ('W', b)))
        return out
    xread = lambda i, reg: (f'ds_read_b128 {q4(reg)}, v{AX} offset:{i*1024}', ('X', i))
    def stage(par):
        ds = DS(p)
        Nn, O = XS[par], XS[1-par]; Wn, Wo = WS_[par], WS_[1-par]
        p.I('s_barrier', f'v_add_u32 v{AX}, s34, v{VX}', f'v_add_u32 v{AWQ}, s34, v{VWQ}', f'v_add_u32 v{AWR}, s34, v{VWR}')
        wr = wreads(Wn)
        head = [wr[0], wr[1], xread(0, Nn[0]), wr[2], wr[3], wr[4], wr[5], xread(1, Nn[1]), wr[6], wr[7], xread(2, Nn[2])]
        k = 0
        for hi, i in enumerate((6, 7, 8)):
            for b in range(4):
                p.I(mf(i, b, Wo, O[hi]))
                if k < len(head): ds.issue(*head[k]); k += 1
        ds.issue(*xread(3, O[0]))
        p.I(f's_add_u32 s34, s34, {Q_STAGE}', f's_cmp_eq_u32 s34, {Q_NS*Q_STAGE}', 's_cselect_b32 s34, 0, s34')
        src = [Nn[0], Nn[1], Nn[2], O[0], O[1], O[2]]
        later = {0: [xread(4, O[1]), xread(5, O[2])], 1: [xread(6, Nn[0])], 2: [xread(7, Nn[1])], 3: [xread(8, Nn[2])]}
        for i in range(6):
            lat = list(later.get(i, []))
            for b in range(4):
                ds.need(('W', b), ('X', i))
                p.I(mf(i, b, Wn, src[i]))
                if lat: ds.issue(*lat.pop(0))
        ds.drain()
    stamp(p, 3)
    p.skip = SKIP
    p.label('P1_QCL')
    stage(0); stage(1)
    p.I('s_sub_u32 s35, s35, 1', 's_cmp_lg_u32 s35, 0', 's_cbranch_scc1 P1_QCL')
    p.skip = None
    p.I('s_barrier')
    for hi, i in enumerate((6, 7, 8)):
        for b in range(4): p.I(mf(i, b, WS_[1], XS[1][hi]))
    stamp(p, 4)
    VP, VRP, E2, ONES, MSKP, MSKC, MSKP1, CS = 152, 170, 188, 192, 196, 200, 204, 208
    p.I('v_and_b32 v5, 15, v1', 'v_lshrrev_b32 v6, 4, v1', f'v_mov_b32 v7, {hexf(-1e30)}',
        f'v_mov_b32 v{CS}, {hexf((DH**-0.5)*1.4426950408889634)}')
    for r in range(4):
        p.I(f'v_lshl_add_u32 v210, v6, 2, {r}', 'v_sub_u32 v211, v5, v210', 'v_and_b32 v212, 1, v211',
            'v_cmp_eq_u32 s[40:41], 0, v212', 'v_cmp_le_i32 s[42:43], 0, v211', 'v_cmp_ge_i32 s[44:45], -2, v211',
            's_and_b64 s[42:43], s[42:43], s[40:41]', 's_and_b64 s[44:45], s[44:45], s[40:41]',
            f'v_cndmask_b32 v{MSKC+r}, v7, 0, s[42:43]', f'v_cndmask_b32 v{MSKP+r}, v7, 0, s[44:45]')
    p.I('s_cmp_eq_u32 s25, 0', 's_cselect_b64 s[40:41], -1, 0')
    for r in range(4): p.I(f'v_cndmask_b32 v{MSKP1+r}, v{MSKP+r}, v7, s[40:41]')
    for r in range(4): p.I(f'v_mov_b32 v{ONES+r}, 0x3f803f80')
    p.I(f'v_mov_b32 v{E2}, 0', f'v_mov_b32 v{E2+1}, 0', 'v_mov_b32 v210, 0x3f80', 'v_mov_b32 v211, 0x3f800000',
        f'v_mov_b32 v{E2+2}, 0', f'v_mov_b32 v{E2+3}, 0',
        'v_cmp_eq_u32 vcc, 32, v1', f'v_cndmask_b32 v{E2+2}, v{E2+2}, v210, vcc',
        'v_cmp_eq_u32 vcc, 33, v1', f'v_cndmask_b32 v{E2+2}, v{E2+2}, v211, vcc',
        'v_cmp_eq_u32 vcc, 34, v1', f'v_cndmask_b32 v{E2+3}, v{E2+3}, v210, vcc',
        'v_cmp_eq_u32 vcc, 35, v1', f'v_cndmask_b32 v{E2+3}, v{E2+3}, v211, vcc')
    p.I('s_mov_b32 s46, 0', 's_mov_b32 s47, 0xffff0000')
    p.I('s_lshl_b32 s30, s26, 2', 's_add_u32 s30, s30, s24', 's_lshr_b32 s31, s30, 3', 's_and_b32 s30, s30, 7',
        's_mul_i32 s31, s31, 5', 's_mul_i32 s32, s25, 80', 's_add_u32 s31, s31, s32',
        's_lshr_b32 s32, s30, 1', 's_add_u32 s32, s32, s31', 's_lshl_b32 s32, s32, 11',
        's_and_b32 s33, s30, 1', 's_lshl_b32 s33, s33, 10', 's_add_u32 s32, s32, s33', f's_add_u32 s32, s32, {WS_OF}',
        's_add_u32 s31, s31, 4', 's_lshl_b32 s31, s31, 11',
        's_and_b32 s33, s30, 3', 's_lshl_b32 s33, s33, 8', 's_add_u32 s31, s31, s33',
        's_lshr_b32 s33, s30, 2', 's_lshl_b32 s33, s33, 10', 's_add_u32 s31, s31, s33', f's_add_u32 s31, s31, {WS_OF}',
        'v_lshlrev_b32 v2, 4, v1', 'v_mov_b32 v3, 0x10000000', 'v_cmp_gt_u32 vcc, 16, v1', 'v_cndmask_b32 v3, v3, v2, vcc')
    def stepA(i):
        Q, K, R, V = (acc(i, b) for b in range(4))
        return [f'v_cvt_pk_bf16_f32 v{Q}, v{Q}, v{Q+1}', f'v_cvt_pk_bf16_f32 v{Q+1}, v{Q+2}, v{Q+3}',
                f'v_cvt_pk_bf16_f32 v{Q+2}, v{R}, v{R+1}', f'v_cvt_pk_bf16_f32 v{Q+3}, v{R+2}, v{R+3}',
                f'v_cvt_pk_bf16_f32 v{K}, v{K}, v{K+1}', f'v_cvt_pk_bf16_f32 v{K+1}, v{K+2}, v{K+3}',
                f'v_cndmask_b32 v{Q+2}, v{Q+2}, 0, s[46:47]', f'v_cndmask_b32 v{Q+3}, v{Q+3}, 0, s[46:47]',
                f'v_mov_b32 v{K+2}, 0', f'v_mov_b32 v{K+3}, 0',
                f'v_cvt_pk_bf16_f32 v{VP+2*i}, v{V}, v{V+1}', f'v_cvt_pk_bf16_f32 v{VP+2*i+1}, v{V+2}, v{V+3}',
                f'v_permlane16_swap_b32 v{Q+2}, v{K+2}', f'v_permlane16_swap_b32 v{Q+3}, v{K+3}',
                f'v_mfma_f32_16x16x32_bf16 {q4(R)}, {q4(Q)}, {q4(E2)}, 0']
    for grp in ((0, 1, 2), (3, 4, 5), (6, 7, 8)):
        for t in interleave(*[stepA(i) for i in grp]): p.I(t)
    for i in range(9):
        R = acc(i, 2)
        p.I(f'v_cvt_pk_bf16_f32 v{VRP+2*i}, v{R}, v{R+1}', f'v_cvt_pk_bf16_f32 v{VRP+2*i+1}, v{R+2}, v{R+3}')
    OA, OB = 8, 16
    def stepB(i, tset):
        Q = acc(i, 0); Kp = acc(i-1, 1); Kc = acc(i, 1); Sp = acc(i, 3); Sc = acc(i, 2)
        M, M2, PF, O0, O1, Lr = tset
        mp = MSKP1 if i == 1 else MSKP
        o = [f'v_mfma_f32_16x16x32_bf16 {q4(Sp)}, {q4(Kp)}, {q4(Q)}, 0', f'v_mfma_f32_16x16x32_bf16 {q4(Sc)}, {q4(Kc)}, {q4(Q)}, 0']
        o += [f'v_pk_fma_f32 {pr(Sp+2*hp)}, {pr(Sp+2*hp)}, {pr(CS)}, {pr(mp+2*hp)} op_sel_hi:[1,0,1]' for hp in range(2)]
        o += [f'v_pk_fma_f32 {pr(Sc+2*hp)}, {pr(Sc+2*hp)}, {pr(CS)}, {pr(MSKC+2*hp)} op_sel_hi:[1,0,1]' for hp in range(2)]
        o += [f'v_max3_f32 v{M}, v{Sp}, v{Sp+1}, v{Sp+2}', f'v_max3_f32 v{M2}, v{Sp+3}, v{Sc}, v{Sc+1}',
              f'v_max3_f32 v{M}, v{M}, v{Sc+2}, v{Sc+3}', f'v_max_f32 v{M}, v{M}, v{M2}',
              f'v_mov_b32 v{M2}, v{M}', f'v_permlane32_swap_b32 v{M}, v{M2}', f'v_max_f32 v{M}, v{M}, v{M2}',
              f'v_mov_b32 v{M2}, v{M}', f'v_permlane16_swap_b32 v{M}, v{M2}', f'v_max_f32 v{M}, v{M}, v{M2}',
              f'v_sub_f32 v{M}, 0, v{M}']
        o += [f'v_pk_add_f32 {pr(b+2*hp)}, {pr(b+2*hp)}, {pr(M)} op_sel_hi:[1,0]' for b in (Sp, Sc) for hp in range(2)]
        o += [f'v_exp_f32 v{b+r}, v{b+r}' for b in (Sp, Sc) for r in range(4)]
        o += [f'v_cvt_pk_bf16_f32 v{PF}, v{Sp}, v{Sp+1}', f'v_cvt_pk_bf16_f32 v{PF+1}, v{Sp+2}, v{Sp+3}',
              f'v_cvt_pk_bf16_f32 v{PF+2}, v{Sc}, v{Sc+1}', f'v_cvt_pk_bf16_f32 v{PF+3}, v{Sc+2}, v{Sc+3}']
        vp = VP + 2*(i-1); vr = VRP + 2*(i-1)
        o += [f'v_mfma_f32_16x16x32_bf16 {q4(Lr)}, {q4(ONES)}, {q4(PF)}, 0', f'v_mfma_f32_16x16x32_bf16 {q4(O0)}, {q4(vp)}, {q4(PF)}, 0',
              f'v_mfma_f32_16x16x32_bf16 {q4(O1)}, {q4(vr)}, {q4(PF)}, 0', f'v_rcp_f32 v{Lr}, v{Lr}']
        o += [f'v_pk_mul_f32 {pr(b+2*hp)}, {pr(b+2*hp)}, {pr(Lr)} op_sel_hi:[1,0]' for b in (O0, O1) for hp in range(2)]
        k = (i - 1) & 1
        o += [f'v_cvt_pk_bf16_f32 v{OA+2*k}, v{O0}, v{O0+1}', f'v_cvt_pk_bf16_f32 v{OA+2*k+1}, v{O0+2}, v{O0+3}',
              f'v_cvt_pk_bf16_f32 v{OB+2*k}, v{O1}, v{O1+1}', f'v_cvt_pk_bf16_f32 v{OB+2*k+1}, v{O1+2}, v{O1+3}']
        return o
    ts = [(212, 213, 216, 220, 224, 228), (214, 215, 232, 236, 240, 244)]
    for i in range(1, 9, 2):
        for t in interleave(stepB(i, ts[0]), stepB(i+1, ts[1])): p.I(t)
        so = ((i-1)//2)*20*2048
        p.I(f's_add_u32 s48, s32, {so}', f's_add_u32 s49, s31, {so}',
            f'buffer_store_dwordx4 {q4(OA)}, v2, {WSS}, s48 offen {HS}', f'buffer_store_dwordx4 {q4(OB)}, v3, {WSS}, s49 offen {HS}')
    stamp(p, 5)
    p.I('s_lshl_b32 s30, s25, 7', 's_lshl_b32 s31, s26, 4', 's_add_u32 s30, s30, s31', f's_add_u32 s30, s30, {WS_FQ}')
    publish_join(p, 'P1_QSIG', 4, 1, 's30', 2, 's31')
    stamp(p, 6)
    p.I('s_branch P3_ENTRY')
```

```python
from base import *
HS = 'sc1'
NS, STAGE = 8, 18432
NO, NY = 10, 27
SKIP = {0: None, 1: ('v_mfma', 'ds_read'), 2: ('v_mfma',), 3: ('ds_read',)}[NOCOMP]

def gen_p3(p):
    p.label('P3_ENTRY')
    stamp(p, 7)
    p.I('s_and_b32 s25, s2, 7', 's_lshr_b32 s26, s2, 3', 's_lshr_b32 s27, s25, 1', 's_lshl_b32 s27, s27, 3', 's_and_b32 s28, s26, 7',
        's_add_u32 s27, s27, s28', 's_and_b32 s28, s25, 1', 's_lshl_b32 s28, s28, 2', 's_lshr_b32 s29, s26, 3', 's_add_u32 s28, s28, s29',
        's_cmp_lt_u32 s24, 4', 's_cbranch_scc1 P3_CONS')
    srd(p, 20, PW2, SZ_W2)
    W2S = 's[20:23]'
    p.I('v_lshlrev_b32 v2, 4, v1',
        'v_lshrrev_b32 v3, 3, v1', 'v_bfe_u32 v4, v1, 4, 2', 'v_lshlrev_b32 v4, 1, v4', 'v_and_b32 v5, 7, v1', 'v_xor_b32 v4, v4, v5',
        'v_lshlrev_b32 v4, 4, v4', 'v_lshl_add_u32 v3, v3, 12, v4',
        's_mul_i32 s30, s28, 102400', f's_add_u32 s30, s30, {WS_WOF}',
        's_mul_i32 s31, s28, 276480', f's_add_u32 s31, s31, {WS_UF}',
        's_mul_i32 s32, s27, 81920', f's_add_u32 s32, s32, {WS_OF}',
        's_lshl_b32 s33, s27, 7')
    for L in range(4):
        if L < 3: p.I(f's_cmp_lg_u32 s24, {4+L}', f's_cbranch_scc1 P3_L{L}_NEXT')
        if L < 2:
            itO = [Item(WSS, 'v2', 's30', L*5120 + m*1024, L*5120 + m*1024, HS) for m in range(5)]
            itY = [Item(WSS, 'v2', 's31', L*5120 + m*1024, L*5120 + m*1024, HS) for m in range(5)]
            phases = [(NO, itO, [('s30', 10240)]), (NY, itY, [('s31', 10240)])]
            if L == 0:
                srd(p, 36, PDBG, 256)
                p.I('s_mov_b64 exec, 1', 'v_mov_b32 v6, 0', 'v_mov_b32 v7, 1', 'buffer_atomic_add v7, v6, s[36:39], 0 offen sc0',
                    's_waitcnt vmcnt(0)', 'v_readfirstlane_b32 s37, v7', 's_cmp_lg_u32 s37, 255', 's_cbranch_scc1 P3_NOEPOCH',
                    f'v_mov_b32 v6, {WS_EPOCH}', f'v_mov_b32 v7, s{TAG}', f'buffer_store_dword v7, v6, {WSS}, 0 offen sc1')
                p.label('P3_NOEPOCH')
                p.I('s_mov_b64 exec, -1')
            lds_go_wait(p, f'P3_GO{L}', 3, 6, 's37', 's38')
        else:
            e = L - 2
            itO = [Item(WSS, 'v2', 's32', (w >> 1)*40960 + e*2048 + (w & 1)*1024, 10240 + e*4096 + w*1024, HS) for w in range(4)]
            itY = [Item(W2S, 'v3', 's33', (32*e + 8*m)*4096, 10240 + e*4096 + m*1024) for m in range(4)]
            phases = [(NO, itO, [('s32', 4096)]), (NY, itY, [('s33', 64*4096)])]
            if L == 2:
                p.I('v_and_b32 v6, 31, v1', 'v_min_u32 v7, 19, v6', 's_lshl_b32 s37, s28, 5', 'v_add_u32 v7, s37, v7', 'v_lshlrev_b32 v7, 4, v7',
                    f'v_add_u32 v7, {WS_FO}, v7',
                    's_lshr_b32 s37, s27, 1', 's_lshl_b32 s37, s37, 7', f's_add_u32 s37, s37, {WS_FQ}',
                    'v_and_b32 v6, 7, v1', 'v_lshlrev_b32 v6, 4, v6', 'v_add_u32 v6, s37, v6',
                    'v_cmp_gt_u32 vcc, 32, v1', 'v_cndmask_b32 v6, v6, v7, vcc')
                poll(p, 'P3_POLLO', 6, 8, 's37')
                lds_go_set(p, 3, 6)
            else:
                lds_go_wait(p, f'P3_GO{L}', 3, 6, 's37', 's38')
        stamp(p, 8)
        gen_loader(p, f'P3_L{L}', phases, NS, STAGE)
        stamp(p, 10); stamp_flush(p)
        p.I('s_endpgm')
        if L < 3: p.label(f'P3_L{L}_NEXT')
    p.label('P3_CONS')
    ACC = 8; SET = [28, 52]; XR = 76; B2 = 86; VA, VB, VBY = 2, 3, 4; VA2, VB2 = 87, 88
    srd(p, 20, PX, SZ_X); srd(p, 36, PB2, S*2); srd(p, 40, POUT, SZ_X)
    p.I('v_and_b32 v5, 15, v1', 's_lshl_b32 s30, s27, 6', 's_lshl_b32 s31, s24, 4', 's_add_u32 s30, s30, s31',
        'v_add_u32 v5, s30, v5', 'v_mul_u32_u24 v6, 1280, v5', 'v_lshrrev_b32 v7, 4, v1', 'v_lshl_add_u32 v6, v7, 3, v6',
        's_mul_i32 s31, s28, 160', 'v_add_u32 v6, s31, v6', 'v_lshlrev_b32 v5, 1, v5')
    for mb in range(5):
        p.I(f'buffer_load_dwordx2 {pr(XR+2*mb)}, v6, s[20:23], 0 offen offset:{32*mb}')
    p.I(f'buffer_load_ushort v{B2}, v5, s[36:39], 0 offen')
    p.I(f'v_lshlrev_b32 v{VA}, 4, v1',
        's_lshr_b32 s31, s24, 1', 's_lshl_b32 s31, s31, 11', 's_and_b32 s30, s24, 1', 's_lshl_b32 s30, s30, 3', 's_add_u32 s31, s31, s30',
        f'v_add_u32 v{VB}, s31, v{VA}', f'v_add_u32 v{VB}, 10240, v{VB}',
        'v_lshrrev_b32 v7, 2, v1', 'v_bfe_u32 v5, v1, 3, 2', 'v_xor_b32 v5, s24, v5', 'v_lshlrev_b32 v5, 5, v5',
        'v_lshl_add_u32 v5, v7, 7, v5', 'v_and_b32 v7, 3, v1', 'v_lshl_add_u32 v5, v7, 3, v5', f'v_add_u32 v{VBY}, 10240, v5')
    for r in range(ACC, ACC+20): p.I(f'v_mov_b32 v{r}, 0')
    for r in range(SET[1], SET[1]+24): p.I(f'v_mov_b32 v{r}, 0')
    p.I('s_mov_b32 s34, 0')
    def mfmas(s):
        return [f'v_mfma_f32_16x16x32_bf16 {q4(ACC+4*mb)}, {q4(SET[s]+4*mb)}, {q4(SET[s]+20)}, {q4(ACC+4*mb)}' for mb in range(5)]
    def reads(s, e, phase):
        b = SET[s] + 20
        if phase == 'O':
            out = [(f'ds_read_b64 {pr(b)}, v{VB2} offset:{e*4096}', (s, 'B')), (f'ds_read_b64 {pr(b+2)}, v{VB2} offset:{e*4096+1024}', (s, 'B'))]
        else:
            out = [(f'ds_read_b64_tr_b16 {pr(b)}, v{VB2} offset:{e*4096}', (s, 'B')), (f'ds_read_b64_tr_b16 {pr(b+2)}, v{VB2} offset:{e*4096+2048}', (s, 'B'))]
        out += [(f'ds_read_b128 {q4(SET[s]+4*mb)}, v{VA2} offset:{e*5120+mb*1024}', (s, mb)) for mb in range(5)]
        return out
    def stage(phase, cnt, lab):
        p.I(f's_mov_b32 s35, {cnt}')
        p.label(lab)
        ds = DS(p)
        if phase == 'O':
            p.I(f's_cmp_lg_u32 s35, {NS-1}', f's_cbranch_scc1 {lab}_NOPOLL', 's_cmp_lg_u32 s24, 1', f's_cbranch_scc1 {lab}_NOPOLL',
                's_lshl_b32 s51, s28, 8', f's_add_u32 s51, s51, {WS_FU}',
                'v_and_b32 v5, 15, v1', 'v_min_u32 v5, 13, v5', 'v_lshlrev_b32 v5, 4, v5', 'v_add_u32 v5, s51, v5')
            poll(p, 'P3_POLLU', 5, 7, 's51')
            p.label(f'{lab}_NOPOLL')
        p.I('s_barrier', f'v_add_u32 v{VA2}, s34, v{VA}', f'v_add_u32 v{VB2}, s34, v{VB if phase == "O" else VBY}')
        r0 = reads(0, 0, phase); k = 0
        for mi, m in enumerate(mfmas(1)):
            for _ in range(2 if mi < 2 else 1):
                if k < len(r0): ds.issue(*r0[k]); k += 1
            p.I(m)
        while k < len(r0): ds.issue(*r0[k]); k += 1
        for t in reads(1, 1, phase): ds.issue(*t)
        p.I(f's_add_u32 s34, s34, {STAGE}', f's_cmp_eq_u32 s34, {NS*STAGE}', 's_cselect_b32 s34, 0, s34')
        for mb, m in enumerate(mfmas(0)):
            ds.need((0, 'B'), (0, mb))
            p.I(m)
        ds.drain()
        p.I('s_sub_u32 s35, s35, 1', 's_cmp_lg_u32 s35, 0', f's_cbranch_scc1 {lab}')
    p.skip = SKIP
    stage('O', NO, 'P3_CO')
    p.skip = None; stamp(p, 8); p.skip = SKIP
    stage('Y', NY, 'P3_CY')
    p.skip = None
    for m in mfmas(1): p.I(m)
    stamp(p, 9)
    p.I('s_waitcnt vmcnt(0)', f'v_lshlrev_b32 v{B2}, 16, v{B2}')
    T = 28
    for mb in range(5):
        x = XR + 2*mb; t = T + 4*mb
        p.I(f'v_lshlrev_b32 v{t}, 16, v{x}', f'v_and_b32 v{t+1}, 0xffff0000, v{x}',
            f'v_lshlrev_b32 v{t+2}, 16, v{x+1}', f'v_and_b32 v{t+3}, 0xffff0000, v{x+1}')
        for r in range(4): p.I(f'v_add_f32 v{t+r}, v{t+r}, v{B2}')
    for mb in range(5):
        a = ACC + 4*mb; t = T + 4*mb
        for r in range(4): p.I(f'v_add_f32 v{t+r}, v{t+r}, v{a+r}')
        p.I(f'v_cvt_pk_bf16_f32 v{t}, v{t}, v{t+1}', f'v_cvt_pk_bf16_f32 v{t+1}, v{t+2}, v{t+3}',
            f'buffer_store_dwordx2 {pr(t)}, v6, s[40:43], 0 offen offset:{32*mb} {opt("ST_OUT", "nt")}')
    if STAMP: p.I('s_waitcnt vmcnt(0)')
    stamp(p, 10); stamp_flush(p)
    p.I('s_endpgm')
```

```python
import sys, os
sys.path.insert(0, os.path.dirname(os.path.abspath(__file__)))
from base import *
import p0, p1, p3

def build():
    p = Prog()
    p.raw(f'.globl {KERNEL}\n.p2align 8\n.type {KERNEL},@function\n{KERNEL}:')
    p.I('s_cmp_ge_u32 s2, 256', 's_cbranch_scc1 K_END',
        f's_load_dwordx16 s[72:87], s[0:1], 0', f's_load_dwordx4 s[88:91], s[0:1], {KA_OUT}', f's_load_dwordx2 s[92:93], s[0:1], {KA_WS}',
        'v_lshrrev_b32 v1, 6, v0', 'v_readfirstlane_b32 s24, v1', 'v_and_b32 v1, 63, v0',
        f'v_mov_b32 v2, {LDS_CNT}', 'v_mov_b32 v4, 0', 'v_mov_b32 v5, 0', 'v_mov_b32 v6, 0', 'v_mov_b32 v7, 0', 'ds_write_b128 v2, v[4:7]')
    if STAMP: p.I('v_mov_b32 v255, 0')
    p.I('s_waitcnt lgkmcnt(0)')
    stamp(p, 0)
    srd(p, 16, PWS, WS_END)
    p.I(f's_load_dword s{SE}, s[{PWS}:{PWS+1}], {WS_EPOCH}', 's_barrier',
        's_cmp_lt_u32 s24, 2', 's_cbranch_scc1 P0_LN', 's_cmp_eq_u32 s24, 2', 's_cbranch_scc1 P0_WARM', 's_cmp_eq_u32 s24, 3', 's_cbranch_scc1 P0_WO')
    p0.gen_wait_ln(p, 'P0_LN', 'K_END')
    p.I('s_branch P0_DONE')
    p0.gen_ln(p); p0.gen_warm(p); p0.gen_wo(p)
    p.label('P0_DONE')
    get_tag(p)
    stamp(p, 2)
    p.I('s_and_b32 s27, s2, 7', 's_lshr_b32 s28, s2, 3', 's_cmp_ge_u32 s27, 4', 's_cbranch_scc1 P1_ISU',
        's_lshr_b32 s25, s27, 1', 's_lshl_b32 s25, s25, 3', 's_and_b32 s29, s28, 7', 's_add_u32 s25, s25, s29',
        's_and_b32 s26, s27, 1', 's_lshl_b32 s26, s26, 2', 's_lshr_b32 s29, s28, 3', 's_add_u32 s26, s26, s29',
        's_cmp_lt_u32 s24, 4', 's_cbranch_scc1 P1_QC', 's_branch P1_QL')
    p.label('P1_ISU')
    p.I('s_sub_u32 s29, s27, 4', 's_and_b32 s25, s28, 7', 's_lshr_b32 s30, s28, 3',
        's_lshl_b32 s26, s29, 2', 's_cmp_eq_u32 s29, 3', 's_cselect_b32 s26, 11, s26', 's_add_u32 s26, s26, s30',
        's_cmp_ge_u32 s29, 2', 's_cselect_b32 s31, 3, 4', 's_cmp_lt_u32 s30, s31', 's_cbranch_scc1 P1_ISU2',
        's_barrier', 's_branch P3_ENTRY')
    p.label('P1_ISU2')
    p.I('s_cmp_lt_u32 s24, 4', 's_cbranch_scc1 P1_UC')
    p1.gen_u_loaders(p)
    p1.gen_u_consumer(p)
    p1.gen_q_loaders(p)
    p1.gen_q_consumer(p)
    p3.gen_p3(p)
    p.label('K_END')
    p.I('s_endpgm')
    body = p.finalize()
    ref = open(os.path.join(os.path.dirname(os.path.abspath(__file__)), '..', 'cdna_kernels', NAME + '.s.ref')).read().split('\n')
    head = [l for l in ref if l.startswith(';') and '@launch' not in l]
    sg = 100 if STAMP else 96
    return '\n'.join(head + [
        f'; @launch grid=(256,1,1) block=(512,1,1) lds={LDS_BYTES}',
        '.amdgcn_target "amdgcn-amd-amdhsa--gfx950"', '.text', body,
        '.section .rodata,"a"', '.p2align 6', f'''.amdhsa_kernel {KERNEL}
  .amdhsa_next_free_vgpr 256
  .amdhsa_next_free_sgpr {sg}
  .amdhsa_accum_offset 256
  .amdhsa_group_segment_fixed_size 0
  .amdhsa_kernarg_size 88
  .amdhsa_user_sgpr_count 2
  .amdhsa_user_sgpr_kernarg_segment_ptr 1
  .amdhsa_system_sgpr_workgroup_id_x 1
  .amdhsa_float_denorm_mode_32 3
.end_amdhsa_kernel''', ''])

if __name__ == '__main__':
    dst = sys.argv[1] if len(sys.argv) > 1 else os.path.join(os.path.dirname(os.path.abspath(__file__)), '..', 'cdna_kernels', NAME + '.s')
    open(dst, 'w').write(build())
    print('wrote', dst)
```
